```python
import torch

def _softmax(x, axis=-1):
    return torch.softmax(x, dim=axis)
def _gelu(x):
    return torch.nn.functional.gelu(x, approximate="tanh")
def _silu(x):
    return torch.nn.functional.silu(x)
def _sigmoid(x):
    return torch.sigmoid(x)
def _layernorm(x, axis=-1, eps=1e-5):
    m = x.mean(dim=axis, keepdim=True)
    v = x.var(dim=axis, keepdim=True, unbiased=False)
    return (x - m) / torch.sqrt(v + eps)
def _scatter_add(tgt, idx, src, axis=0):
    return tgt.clone().index_add_(axis, idx, src)
def _segment_sum(src, seg, n):
    out = torch.zeros((n,) + src.shape[1:], dtype=src.dtype)
    return out.index_add_(0, seg, src)
def _pad(x, pw):
    flat = tuple(v for pair in reversed(pw) for v in pair)
    return torch.nn.functional.pad(x, flat)

kernel_name = 'recurrent_scan__sliding_block__glu_gated_geglu__prompt'

def setup_inputs():

    _w = (lambda a: (lambda t: t.to(torch.bfloat16) if t.is_floating_point() else t)(torch.as_tensor(a)))
    def _A_setup():
        B, S, D = 1, 2048, 512
        return {
            "x": _w((lambda *s: torch.randn(*s, dtype=torch.bfloat16) * 0.05)(B, S, D)),
            "wqkv": _w((lambda *s: torch.randn(*s, dtype=torch.bfloat16) * 0.2)(D, 3 * D)),
            "wo": _w((lambda *s: torch.randn(*s, dtype=torch.bfloat16) * 0.2)(D, D)),
        }
    _A_in = _A_setup()

    def _B_setup():
        B, S, Dm, Df = 1, 2048, 512, 1792
        return {
            "x": _w((lambda *s: torch.randn(*s, dtype=torch.bfloat16) * 0.05)(B, S, Dm)),
            "w_gate": _w((lambda *s: torch.randn(*s, dtype=torch.bfloat16) * 0.1)(Dm, Df) * (Dm ** -0.5)),
            "w_up": _w((lambda *s: torch.randn(*s, dtype=torch.bfloat16) * 0.1)(Dm, Df) * (Dm ** -0.5)),
            "w_down": _w((lambda *s: torch.randn(*s, dtype=torch.bfloat16) * 0.1)(Df, Dm) * (Df ** -0.5)),
        }
    _B_in = _B_setup()

    return {
        "A_x": _A_in["x"],
        "A_wqkv": _A_in["wqkv"],
        "A_wo": _A_in["wo"],
        "B_x": _B_in["x"],
        "B_w_gate": _B_in["w_gate"],
        "B_w_up": _B_in["w_up"],
        "B_w_down": _B_in["w_down"],
    }

def reference(A_x, A_wqkv, A_wo, B_x, B_w_gate, B_w_up, B_w_down):
    def _A_ref(x, wqkv, wo):
        B, S, D = x.shape
        H = 32; Dh = D // H; W = 256
        qkv = (lambda x, *d: x.permute(*d))((x @ wqkv).reshape(B, S, 3, H, Dh), 2, 0, 3, 1, 4)
        q, k, v = qkv[0], qkv[1], qkv[2]
        scores = torch.einsum("bhqd,bhkd->bhqk", q, k) * (Dh ** -0.5)
        idx = torch.arange(S)
        mask = (idx[:, None] - idx[None, :] >= 0) & (idx[:, None] - idx[None, :] < W)
        scores = torch.where(mask[None, None], scores, -1e9)
        p = _softmax(scores, axis=-1)
        o = torch.einsum("bhqk,bhkd->bhqd", p, v)
        return (lambda x, *d: x.permute(*d))(o, 0, 2, 1, 3).reshape(B, S, D) @ wo

    def _B_ref(x, w_gate, w_up, w_down):
        g = torch.einsum("bsd,df->bsf", x, w_gate)
        u = torch.einsum("bsd,df->bsf", x, w_up)
        h = _gelu(g) * u
        return torch.einsum("bsf,fd->bsd", h, w_down)

    x = A_x
    xn = _layernorm(x, axis=-1)
    s = _A_ref(xn, A_wqkv, A_wo)
    g = _silu(_B_ref(xn, B_w_gate, B_w_up, B_w_down))
    return x + s * g
```

```python
NAME='recurrent_scan__sliding_block__glu_gated_geglu__prompt'
L=[]
def e(s): L.append('  '+s)
def lab(s): L.append(s+':')
WS_QKV=0; WS_H=8<<20; WS_O=16<<20
LOG2E=1.4426950408889634
import struct
def f2u(f): return struct.unpack('<I',struct.pack('<f',f))[0]
def rbf(dst,src):
    e(f'v_cvt_pk_bf16_f32 v{dst}, v{src}, v{src}'); e(f'v_lshlrev_b32 v{dst}, 16, v{dst}')
def lo(d,s): e(f'v_lshlrev_b32 v{d}, 16, v{s}')
def hi(d,s): e(f'v_and_b32 v{d}, 0xffff0000, v{s}')

def k1():
    K='k1_kernel'
    L.append(f'.globl {K}\n.p2align 8\n.type {K},@function'); lab(K)
    ACC=100; XF=[180,184]; WF=[188,208]; XS=228
    MM=[236,237]; SQ=[238,239]; RI=[240,241]; XOFF=[242,243]; XW=[244,245]; XA=246; WA=250; DP=10
    WB=[0,40960]; XB=[81920,98304]
    e('s_cmp_ge_u32 s2, 256'); e('s_cbranch_scc1 k1_end')
    e('s_load_dwordx2 s[4:5], s[0:1], 0'); e('s_load_dwordx2 s[6:7], s[0:1], 8')
    e('s_load_dwordx4 s[8:11], s[0:1], 32'); e('s_load_dwordx2 s[12:13], s[0:1], 72')
    e('s_lshr_b32 s14, s2, 4'); e('s_and_b32 s15, s2, 15')
    e('v_and_b32 v1, 63, v0'); e('v_lshrrev_b32 v2, 6, v0'); e('s_nop 0'); e('v_readfirstlane_b32 s16, v2')
    e('s_lshl_b32 s17, s14, 7'); e('s_lshl_b32 s18, s16, 4'); e('s_add_u32 s17, s17, s18'); e('s_lshl_b32 s18, s17, 10')
    e('v_lshrrev_b32 v3, 3, v1'); e('v_and_b32 v4, 7, v1')
    e('v_lshlrev_b32 v5, 10, v3'); e('v_lshl_add_u32 v5, v4, 4, v5'); e(f'v_add_u32 v{XOFF[0]}, s18, v5'); e(f'v_add_u32 v{XOFF[1]}, 0x2000, v{XOFF[0]}')
    e('s_waitcnt lgkmcnt(0)')
    for i in range(2):
        for j in range(8):
            r=20+(i*8+j)*4
            e(f'global_load_dwordx4 v[{r}:{r+3}], v{XOFF[i]}, s[4:5] offset:{j*128}')
    e('v_lshrrev_b32 v6, 4, v1')
    for i in range(2):
        e(f'v_add_u32 v7, {4*i}, v6'); e('v_xor_b32 v7, v4, v7'); e('v_lshlrev_b32 v7, 4, v7')
        e('v_lshl_add_u32 v7, v3, 7, v7'); e(f's_lshl_b32 s19, s16, 11'); e(f's_add_u32 s19, s19, {XB[0]+i*1024}')
        e(f'v_add_u32 v{XW[i]}, s19, v7')
    e('s_and_b32 s20, s16, 3'); e('s_lshr_b32 s21, s16, 2')
    e('v_and_b32 v7, 31, v1'); e('v_lshlrev_b32 v7, 7, v7'); e('s_lshl_b32 s19, s20, 12'); e(f's_add_u32 s19, s19, {XB[0]}'); e('v_add_u32 v7, s19, v7')
    e('v_lshrrev_b32 v8, 1, v1'); e('v_and_b32 v8, 7, v8')
    e('v_lshrrev_b32 v9, 5, v1'); e('v_and_b32 v84, 1, v8'); e('v_xor_b32 v9, v9, v84')
    e('v_lshrrev_b32 v8, 1, v8')
    for s in range(4):
        e(f'v_xor_b32 v84, {s}, v8'); e('v_lshl_or_b32 v84, v84, 1, v9'); e(f'v_lshl_add_u32 v{XA+s}, v84, 4, v7')
    e('v_lshrrev_b32 v7, 4, v1'); e('v_and_b32 v8, 15, v1')
    e('v_lshrrev_b32 v9, 1, v7'); e('v_lshlrev_b32 v9, 3, v9'); e('v_lshrrev_b32 v84, 2, v8'); e('v_add_u32 v9, v9, v84'); e('v_lshlrev_b32 v9, 6, v9')
    e('v_and_b32 v84, 1, v7'); e('v_lshl_add_u32 v9, v84, 5, v9'); e('v_and_b32 v84, 3, v8'); e('v_lshl_add_u32 v9, v84, 3, v9')
    e('s_mul_i32 s19, s21, 20480'); e(f's_add_u32 s19, s19, {WB[0]}'); e(f'v_add_u32 v{WA}, s19, v9')
    e('v_lshrrev_b32 v7, 2, v1'); e('v_and_b32 v8, 3, v1')
    e('v_cmp_lt_u32 s[40:41], 1, v8')
    e('s_mul_i32 s22, s16, 5'); e('s_mul_i32 s23, s15, 10')
    for i in range(5):
        e(f's_add_u32 s24, s22, {i}'); e('s_lshr_b32 s25, s24, 2'); e('s_and_b32 s26, s24, 3'); e('s_add_u32 s25, s25, s23')
        e('s_cmp_lt_u32 s25, 48')
        e('s_movk_i32 s27, 3584'); e('s_cselect_b32 s27, 3072, s27'); e('s_cselect_b32 s28, 3, 1')
        e('s_lshl_b32 s29, s25, 6'); e('s_sub_u32 s30, s25, 48'); e('s_lshl_b32 s30, s30, 5'); e('s_cmp_lt_u32 s25, 48'); e('s_cselect_b32 s29, s29, s30')
        e('s_cselect_b32 s32, s6, s8'); e('s_cselect_b32 s33, s7, s9'); e('s_cselect_b32 s34, s6, s10'); e('s_cselect_b32 s35, s7, s11')
        e(f's_lshl_b32 s{44+i}, s27, 6')
        e('s_lshl_b32 s26, s26, 4'); e('v_add_u32 v9, s26, v7'); e('v_mul_lo_u32 v9, v9, s27'); e('v_add_u32 v9, s29, v9')
        e('v_and_b32 v84, s28, v8'); e('v_lshl_add_u32 v9, v84, 4, v9')
        e('v_mov_b32 v84, s32'); e('v_mov_b32 v85, s34'); e('v_cndmask_b32 v84, v84, v85, s[40:41]')
        e('v_mov_b32 v85, s33'); e('v_mov_b32 v86, s35'); e('v_cndmask_b32 v85, v85, v86, s[40:41]')
        e(f'v_add_co_u32 v{DP+2*i}, vcc, v84, v9'); e(f'v_addc_co_u32 v{DP+2*i+1}, vcc, 0, v85, vcc')
    e('s_lshl_b32 s50, s22, 10')
    e('s_waitcnt vmcnt(0)')
    def red8(s):
        for d in ['quad_perm:[1,0,3,2]','quad_perm:[2,3,0,1]','row_half_mirror']:
            e('s_nop 1'); e(f'v_add_f32_dpp v{s}, v{s}, v{s} {d} row_mask:0xf bank_mask:0xf')
    for i in range(2):
        D=20+i*32
        e('v_mov_b32 v86, 0'); e('v_mov_b32 v87, 0')
        for r in range(32):
            lo(84,D+r); hi(85,D+r); e('v_add_f32 v86, v86, v84'); e('v_add_f32 v87, v87, v85')
        e('v_add_f32 v86, v86, v87'); red8(86); e(f'v_mul_f32 v86, {f2u(1/512):#x}, v86')
        e('v_mov_b32 v87, 0'); e('v_mov_b32 v88, 0')
        for r in range(32):
            lo(84,D+r); hi(85,D+r); e('v_sub_f32 v84, v84, v86'); e('v_sub_f32 v85, v85, v86'); e('v_fmac_f32 v87, v84, v84'); e('v_fmac_f32 v88, v85, v85')
        e('v_add_f32 v87, v87, v88'); red8(87); e(f'v_mul_f32 v87, {f2u(1/512):#x}, v87')
        rbf(MM[i],86); rbf(87,87); e(f'v_add_f32 v87, {f2u(1e-5):#x}, v87'); rbf(87,87)
        e('v_sqrt_f32 v87, v87'); e('s_nop 0'); rbf(SQ[i],87); e(f'v_rcp_f32 v{RI[i]}, v{SQ[i]}'); e('s_nop 0')
    def xload(t):
        for i in range(2): e(f'global_load_dwordx4 v[{XS+4*i}:{XS+4*i+3}], v{XOFF[i]}, s[4:5] offset:{t*128}')
    def dma(t):
        b=t%2
        for i in range(5):
            e(f's_add_u32 m0, s50, {WB[b]+i*1024}'); e('s_nop 0')
            e(f'global_load_lds_dwordx4 v[{DP+2*i}:{DP+2*i+1}], off')
            e(f'v_add_co_u32 v{DP+2*i}, vcc, s{44+i}, v{DP+2*i}'); e(f'v_addc_co_u32 v{DP+2*i+1}, vcc, 0, v{DP+2*i+1}, vcc')
    def norm(t):
        S=L[:]; del L[:]
        for i in range(2):
            for r in range(4):
                x=XS+4*i+r
                lo(84,x); hi(85,x); e(f'v_sub_f32 v84, v84, v{MM[i]}'); e(f'v_sub_f32 v85, v85, v{MM[i]}')
                e('v_cvt_pk_bf16_f32 v84, v84, v85'); hi(85,84); lo(84,84)
                e(f'v_mul_f32 v86, v84, v{RI[i]}'); e(f'v_mul_f32 v87, v85, v{RI[i]}')
                e(f'v_fma_f32 v84, -v86, v{SQ[i]}, v84'); e(f'v_fma_f32 v85, -v87, v{SQ[i]}, v85')
                e(f'v_fmac_f32 v86, v84, v{RI[i]}'); e(f'v_fmac_f32 v87, v85, v{RI[i]}')
                e(f'v_cvt_pk_bf16_f32 v{x}, v86, v87')
        out=L[:]; L[:]=S; return out
    def xwrite(t):
        for i in range(2): e(f'ds_write_b128 v{XW[i]}, v[{XS+4*i}:{XS+4*i+3}] offset:{(t%2)*16384}')
    def reads(t,s):
        b=t%2; p=s%2
        e(f'ds_read_b128 v[{XF[p]}:{XF[p]+3}], v{XA+s} offset:{b*16384}')
        for tt in range(5):
            for ee in range(2):
                r=WF[p]+tt*4+ee*2
                e(f'ds_read_b64_tr_b16 v[{r}:{r+1}], v{WA} offset:{b*40960+tt*4096+s*1024+ee*256}')
    def mf(s,tt):
        p=s%2; a=ACC+16*tt
        e(f'v_mfma_f32_32x32x16_bf16 v[{a}:{a+15}], v[{WF[p]+tt*4}:{WF[p]+tt*4+3}], v[{XF[p]}:{XF[p]+3}], v[{a}:{a+15}]')
    for r in range(80): e(f'v_mov_b32 v{ACC+r}, 0')
    xload(0); dma(0); dma(1)
    e('s_waitcnt vmcnt(10)')
    for s_ in norm(0): L.append(s_)
    xwrite(0)
    xload(1)
    e('s_waitcnt vmcnt(0) lgkmcnt(0)'); e('s_barrier')
    reads(0,0)
    NS=8
    for t in range(NS):
        for s in range(4):
            if s<3:
                if s==2 and t+1<NS: xwrite(t+1)
                reads(t,s+1); e('s_waitcnt lgkmcnt(11)')
            else:
                e('s_waitcnt vmcnt(0) lgkmcnt(0)'); e('s_barrier')
                if t+2<NS: xload(t+2); dma(t+2)
                if t+1<NS: reads(t+1,0)
            nl=norm(t+1) if (s==1 and t+1<NS) else []
            if nl: e('s_waitcnt vmcnt(5)' if t>0 else 's_waitcnt vmcnt(0)')
            ch=(len(nl)+4)//5
            for tt in range(5):
                mf(s,tt)
                for s_ in nl[tt*ch:(tt+1)*ch]: L.append(s_)
    e('s_nop 15'); e('s_nop 3')
    e('v_and_b32 v3, 31, v1'); e('v_lshrrev_b32 v4, 5, v1')
    e('s_lshl_b32 s17, s14, 7'); e('s_lshl_b32 s18, s20, 5'); e('s_add_u32 s17, s17, s18'); e('v_add_u32 v3, s17, v3')
    e('v_lshlrev_b32 v5, 5, v3'); e('v_lshl_add_u32 v5, v4, 3, v5'); e('v_add_u32 v6, 0x10000, v5')
    e('s_movk_i32 s24, 3584'); e('v_mul_lo_u32 v7, v3, s24'); e('v_lshl_add_u32 v7, v4, 3, v7')
    e(f's_add_u32 s36, s12, {WS_H}'); e('s_addc_u32 s37, s13, 0')
    e(f's_mov_b32 s38, {f2u(-2*0.7978845608028654*LOG2E):#x}'); e(f's_mov_b32 s39, {f2u(-2*0.7978845608028654*LOG2E*0.044715):#x}')
    e('s_mul_i32 s23, s15, 10'); e('s_mul_i32 s22, s21, 5'); e('s_add_u32 s23, s23, s22')
    for tt in range(5):
        a=ACC+16*tt
        e(f's_add_u32 s25, s23, {tt}'); e('s_cmp_lt_u32 s25, 48'); e(f's_cbranch_scc0 k1_ffn{tt}')
        e('s_lshl_b32 s26, s25, 17'); e('s_add_u32 s26, s12, s26'); e('s_addc_u32 s27, s13, 0')
        for g in range(4):
            e(f'v_cvt_pk_bf16_f32 v84, v{a+4*g}, v{a+4*g+1}'); e(f'v_cvt_pk_bf16_f32 v85, v{a+4*g+2}, v{a+4*g+3}')
            e(f'global_store_dwordx2 v{5+(g>>1)}, v[84:85], s[26:27] offset:{(g&1)*16}')
            e('s_nop 0')
        e(f's_branch k1_nx{tt}')
        lab(f'k1_ffn{tt}')
        e('s_sub_u32 s26, s25, 48'); e('s_lshl_b32 s26, s26, 5'); e('v_add_u32 v8, s26, v7')
        for g in range(2):
            for r in range(4):
                G=a+4*g+r; U=a+8+4*g+r; T=86+r
                rbf(G,G); rbf(U,U)
                e(f'v_mul_f32 v84, v{G}, v{G}')
                e(f'v_mov_b32 v85, s38'); e(f'v_fmac_f32 v85, s39, v84'); e(f'v_mul_f32 v85, v85, v{G}')
                e('v_exp_f32 v85, v85'); e('s_nop 0'); e('v_add_f32 v85, 1.0, v85'); e('v_rcp_f32 v85, v85'); e('s_nop 0')
                e(f'v_mul_f32 v85, v85, v{G}'); rbf(85,85); e(f'v_mul_f32 v{T}, v85, v{U}')
            e('v_cvt_pk_bf16_f32 v84, v86, v87'); e('v_cvt_pk_bf16_f32 v85, v88, v89')
            e(f'global_store_dwordx2 v8, v[84:85], s[36:37] offset:{g*16}')
            e('s_nop 0')
        lab(f'k1_nx{tt}')
    lab('k1_end'); e('s_endpgm')

def k2():
    K='k2_kernel'
    L.append(f'.globl {K}\n.p2align 8\n.type {K},@function'); lab(K)
    S=100; KF=20; QF=56; VF=[60,64]; O=68
    e('s_cmp_ge_u32 s2, 512'); e('s_cbranch_scc1 k2_end')
    e('s_load_dwordx2 s[12:13], s[0:1], 72')
    e('s_lshr_b32 s14, s2, 4'); e('s_and_b32 s15, s2, 15')
    e('v_and_b32 v1, 63, v0'); e('v_lshrrev_b32 v2, 6, v0'); e('s_nop 0'); e('v_readfirstlane_b32 s16, v2')
    e('s_lshl_b32 s17, s15, 7'); e('s_lshl_b32 s18, s14, 11')
    e('v_lshrrev_b32 v3, 1, v1'); e('v_and_b32 v4, 1, v1')
    e('s_waitcnt lgkmcnt(0)')
    e(f's_add_u32 s20, s12, {2<<20}'); e('s_addc_u32 s21, s13, 0'); e(f's_add_u32 s22, s12, {4<<20}'); e('s_addc_u32 s23, s13, 0')
    for c in range(3):
        e(f's_add_u32 s24, s16, {4*c}'); e('s_lshl_b32 s25, s24, 5'); e('s_add_u32 s25, s25, s17'); e('s_sub_u32 s25, s25, 256')
        e('v_add_u32 v5, s25, v3'); e('v_max_i32 v5, 0, v5'); e('v_add_u32 v5, s18, v5'); e('v_lshlrev_b32 v5, 5, v5'); e('v_lshl_add_u32 v5, v4, 4, v5')
        e('s_lshl_b32 m0, s24, 10'); e('s_nop 0'); e('global_load_lds_dwordx4 v5, s[20:21]')
        e('s_lshl_b32 s24, s24, 10'); e('s_add_u32 m0, s24, 12288'); e('s_nop 0'); e('global_load_lds_dwordx4 v5, s[22:23]')
    e('v_and_b32 v6, 31, v1'); e('v_lshrrev_b32 v7, 5, v1')
    e('s_lshl_b32 s24, s16, 5'); e('s_add_u32 s25, s24, s17')
    e('s_add_u32 s26, s25, s18'); e('v_add_u32 v8, s26, v6'); e('v_lshlrev_b32 v8, 5, v8'); e('v_lshl_add_u32 v8, v7, 4, v8')
    e(f'global_load_dwordx4 v[{QF}:{QF+3}], v8, s[12:13]')
    e('v_add_u32 v9, s24, v6'); e('v_lshlrev_b32 v9, 5, v9'); e('v_lshl_add_u32 v9, v7, 4, v9')
    e('v_and_b32 v84, 15, v1'); e('v_lshrrev_b32 v85, 2, v84'); e('v_lshl_add_u32 v85, v7, 2, v85'); e('v_add_u32 v85, s24, v85'); e('v_lshlrev_b32 v85, 5, v85')
    e('v_and_b32 v84, 3, v84'); e('v_lshl_add_u32 v10, v84, 3, v85'); e('v_add_u32 v10, 0x3000, v10')
    e('v_lshlrev_b32 v84, 2, v7'); e('v_sub_u32 v11, v6, v84')
    e('v_mov_b32 v12, 0xff800000')
    e('s_lshr_b32 s27, s25, 5'); e('s_sub_u32 s27, 8, s27'); e('s_cmp_lt_u32 s25, 256'); e('s_cselect_b32 s27, s27, 0')
    e(f's_mov_b32 s28, {f2u(0.25*LOG2E):#x}')
    e('s_waitcnt vmcnt(0)'); e('s_barrier')
    for t in range(9): e(f'ds_read_b128 v[{KF+4*t}:{KF+4*t+3}], v9 offset:{t*1024}')
    for t in range(9):
        e(f's_waitcnt lgkmcnt({8-t})')
        e(f'v_mfma_f32_32x32x16_bf16 v[{S+16*t}:{S+16*t+15}], v[{KF+4*t}:{KF+4*t+3}], v[{QF}:{QF+3}], 0')
    e('s_nop 15')
    for t in range(9):
        b=S+16*t
        for r in range(0,16,2):
            e(f'v_cvt_pk_bf16_f32 v84, v{b+r}, v{b+r+1}'); lo(b+r,84); hi(b+r+1,84)
        if t in (0,8):
            for r0 in range(0,16,4):
                for r in range(r0,r0+4):
                    ko=(r//4)*8+r%4
                    e(f'v_cmp_{"gt" if t==0 else "le"}_i32 s[{40+2*(r%4)}:{41+2*(r%4)}], {ko}, v11')
                for r in range(r0,r0+4):
                    e(f'v_cndmask_b32 v{b+r}, v12, v{b+r}, s[{40+2*(r%4)}:{41+2*(r%4)}]')
        if t<8:
            e(f's_cmp_lt_u32 {t}, s27'); e(f's_cbranch_scc0 k2_sk{t}')
            for r in range(16): e(f'v_mov_b32 v{b+r}, v12')
            lab(f'k2_sk{t}')
    e(f'v_max_f32 v84, v{S}, v{S+1}')
    for r in range(2,144,2): e(f'v_max3_f32 v84, v84, v{S+r}, v{S+r+1}')
    e('v_mov_b32 v85, v84'); e('s_nop 1'); e('v_permlane32_swap_b32 v84, v85'); e('v_max_f32 v84, v84, v85'); e('v_mul_f32 v84, s28, v84')
    e('v_mov_b32 v86, 0'); e('v_mov_b32 v87, 0')
    for r in range(144):
        e(f'v_fma_f32 v{S+r}, v{S+r}, s28, -v84'); e(f'v_exp_f32 v{S+r}, v{S+r}')
    e('s_nop 0')
    for r in range(0,144,2): e(f'v_add_f32 v86, v86, v{S+r}'); e(f'v_add_f32 v87, v87, v{S+r+1}')
    e('v_add_f32 v86, v86, v87'); e('v_mov_b32 v85, v86'); e('s_nop 1'); e('v_permlane32_swap_b32 v86, v85'); e('v_add_f32 v86, v86, v85')
    e('v_rcp_f32 v86, v86'); e('s_nop 0')
    for r in range(0,144,2):
        e(f'v_mul_f32 v{S+r}, v{S+r}, v86'); e(f'v_mul_f32 v{S+r+1}, v{S+r+1}, v86'); e(f'v_cvt_pk_bf16_f32 v{S+r//2}, v{S+r}, v{S+r+1}')
    def vread(u):
        t,hf=divmod(u,2); p=u%2
        for ee in range(2): e(f'ds_read_b64_tr_b16 v[{VF[p]+2*ee}:{VF[p]+2*ee+1}], v10 offset:{t*1024+hf*512+ee*256}')
    vread(0)
    for u in range(18):
        if u<17: vread(u+1); e('s_waitcnt lgkmcnt(2)')
        else: e('s_waitcnt lgkmcnt(0)')
        c='0' if u==0 else f'v[{O}:{O+15}]'
        e(f'v_mfma_f32_32x32x16_bf16 v[{O}:{O+15}], v[{VF[u%2]}:{VF[u%2]+3}], v[{S+4*u}:{S+4*u+3}], {c}')
    e('s_nop 15'); e('s_nop 3')
    e('v_add_u32 v8, s25, v6'); e('v_lshlrev_b32 v8, 10, v8'); e('v_lshl_add_u32 v8, v7, 3, v8'); e('s_lshl_b32 s26, s14, 5'); e('v_add_u32 v8, s26, v8')
    e(f's_add_u32 s20, s12, {WS_O}'); e('s_addc_u32 s21, s13, 0')
    for g in range(2):
        e(f'v_cvt_pk_bf16_f32 v84, v{O+4*g}, v{O+4*g+1}'); e(f'v_cvt_pk_bf16_f32 v85, v{O+4*g+2}, v{O+4*g+3}')
        e(f'global_store_dwordx2 v8, v[84:85], s[20:21] offset:{16*g}'); e('s_nop 0')
    lab('k2_end'); e('s_endpgm')

def k3():
    K=NAME+'_kernel'
    L.append(f'.globl {K}\n.p2align 8\n.type {K},@function'); lab(K)
    ACC=[100,116]; AF=[132,136]; WF=[140,144]; AA=150; WA=158; AO=[160,168]; WO=176
    AB=[0,65536]; WBo=32768
    e('s_cmp_ge_u32 s2, 256'); e('s_cbranch_scc1 k3_end')
    e('s_load_dwordx2 s[4:5], s[0:1], 0'); e('s_load_dwordx2 s[6:7], s[0:1], 16'); e('s_load_dwordx2 s[8:9], s[0:1], 48')
    e('s_load_dwordx2 s[10:11], s[0:1], 56'); e('s_load_dwordx2 s[12:13], s[0:1], 72')
    e('s_lshr_b32 s14, s2, 3'); e('s_and_b32 s15, s2, 7')
    e('v_and_b32 v1, 63, v0'); e('v_lshrrev_b32 v2, 6, v0'); e('s_nop 0'); e('v_readfirstlane_b32 s16, v2')
    e('s_and_b32 s20, s16, 1'); e('s_lshr_b32 s21, s16, 1')
    e('v_lshrrev_b32 v3, 5, v1'); e('v_and_b32 v4, 31, v1')
    e('s_lshl_b32 s17, s14, 6'); e('s_lshl_b32 s18, s16, 4'); e('s_add_u32 s17, s17, s18'); e('v_add_u32 v5, s17, v3')
    for c in range(8):
        e(f'v_add_u32 v6, {2*c}, v3'); e('v_xor_b32 v6, v4, v6'); e('v_lshlrev_b32 v6, 4, v6')
        e(f'v_add_u32 v7, {2*c}, v5'); e(f'v_lshl_add_u32 v{AO[0]+c}, v7, 10, v6')
        e('s_movk_i32 s24, 3584'); e('v_mul_lo_u32 v7, v7, s24'); e(f'v_add_u32 v{AO[1]+c}, v7, v6')
    e('v_lshrrev_b32 v6, 2, v1'); e('s_lshl_b32 s24, s20, 7'); e('v_add_u32 v6, s24, v6'); e('v_lshlrev_b32 v6, 10, v6')
    e('v_and_b32 v7, 3, v1'); e('v_lshl_add_u32 v6, v7, 4, v6'); e('s_lshl_b32 s24, s15, 7'); e('s_lshl_b32 s25, s21, 6'); e('s_add_u32 s24, s24, s25'); e(f'v_add_u32 v{WO}, s24, v6')
    e('s_lshl_b32 s24, s20, 5'); e('v_add_u32 v6, s24, v4'); e('v_lshlrev_b32 v7, 9, v6'); e('v_and_b32 v6, 15, v6')
    for s in range(8):
        e(f'v_lshl_add_u32 v8, {s}, 1, v3'); e('v_xor_b32 v8, v8, v6'); e(f'v_lshl_add_u32 v{AA+s}, v8, 4, v7')
    e('v_lshrrev_b32 v7, 4, v1'); e('v_and_b32 v8, 15, v1')
    e('v_lshrrev_b32 v9, 1, v7'); e('v_lshlrev_b32 v9, 3, v9'); e('v_lshrrev_b32 v84, 2, v8'); e('v_add_u32 v9, v9, v84'); e('v_lshlrev_b32 v9, 6, v9')
    e('v_and_b32 v84, 1, v7'); e('v_lshl_add_u32 v9, v84, 5, v9'); e('v_and_b32 v84, 3, v8'); e('v_lshl_add_u32 v9, v84, 3, v9')
    e('s_lshl_b32 s24, s21, 14'); e(f's_add_u32 s24, s24, {WBo}'); e(f'v_add_u32 v{WA}, s24, v9')
    e('s_waitcnt lgkmcnt(0)')
    e('s_lshl_b32 s22, s16, 13')
    e('s_lshl_b32 s23, s21, 14'); e('s_lshl_b32 s24, s20, 13'); e('s_add_u32 s23, s23, s24'); e(f's_add_u32 s23, s23, {WBo}')
    def dma(t):
        b=t%2
        if t<2: ab=(2<<20)*8+t*512; wlo,whi='s6','s7'; wk=t*256; ao=AO[0]
        else: ab=WS_H+(t-2)*512; wlo,whi='s8','s9'; wk=(t-2)*256; ao=AO[1]
        e(f's_add_u32 s30, s12, {ab}'); e('s_addc_u32 s31, s13, 0')
        for c in range(8):
            e(f's_add_u32 m0, s22, {AB[b]+c*1024}'); e('s_nop 0'); e(f'global_load_lds_dwordx4 v{ao+c}, s[30:31]')
        for c in range(8):
            e(f's_add_u32 s32, {wlo}, {(wk+c*16)*1024}'); e(f's_addc_u32 s33, {whi}, 0')
            e(f's_add_u32 m0, s23, {AB[b]+c*1024}'); e('s_nop 0'); e(f'global_load_lds_dwordx4 v{WO}, s[32:33]')
    def reads(t,s):
        b=t%2; p=s%2
        e(f'ds_read_b128 v[{AF[p]}:{AF[p]+3}], v{AA+s%8} offset:{(s//8)*256}' + ('' ) )
        if b: L[-1]=L[-1].replace(f'offset:{(s//8)*256}',f'offset:{(s//8)*256}')
        for ee in range(2):
            e(f'ds_read_b64_tr_b16 v[{WF[p]+2*ee}:{WF[p]+2*ee+1}], v{WA} offset:{s*1024+ee*256}')
    for r in range(32): e(f'v_mov_b32 v{ACC[0]+r}, 0')
    dma(0); dma(1)
    e('s_waitcnt vmcnt(16)'); e('s_barrier')
    reads(0,0)
    NS=9
    for t in range(NS):
        a=ACC[0] if t<2 else ACC[1]
        for s in range(16):
            if s<15:
                reads(t,s+1); e('s_waitcnt lgkmcnt(3)')
            else:
                e('s_waitcnt vmcnt(0) lgkmcnt(0)'); e('s_barrier')
                if t+2<NS: dma(t+2)
                if t+1<NS:
                    d = 65536 if (t+1)%2 else -65536
                    for r in list(range(AA,AA+8))+[WA]: e(f'v_add_u32 v{r}, {d&0xffffffff:#x}, v{r}')
                    reads(t+1,0)
            p=s%2
            e(f'v_mfma_f32_32x32x16_bf16 v[{a}:{a+15}], v[{WF[p]}:{WF[p]+3}], v[{AF[p]}:{AF[p]+3}], v[{a}:{a+15}]')
    e('s_nop 15'); e('s_nop 3')
    e('s_lshl_b32 s17, s14, 6'); e('s_lshl_b32 s18, s20, 5'); e('s_add_u32 s17, s17, s18'); e('v_add_u32 v5, s17, v4'); e('v_lshlrev_b32 v5, 10, v5')
    e('v_lshl_add_u32 v5, v3, 3, v5'); e('s_lshl_b32 s24, s15, 7'); e('s_lshl_b32 s25, s21, 6'); e('s_add_u32 s24, s24, s25'); e('v_add_u32 v5, s24, v5')
    for g in range(4): e(f'global_load_dwordx2 v[{20+2*g}:{21+2*g}], v5, s[4:5] offset:{16*g}')
    e(f's_mov_b32 s38, {f2u(-LOG2E):#x}')
    for g in range(4):
        for r in range(4):
            Sg=ACC[0]+4*g+r; F=ACC[1]+4*g+r
            rbf(Sg,Sg); rbf(F,F)
            e(f'v_mul_f32 v85, s38, v{F}'); e('v_exp_f32 v85, v85'); e('s_nop 0'); e('v_add_f32 v85, 1.0, v85'); e('v_rcp_f32 v85, v85'); e('s_nop 0')
            e(f'v_mul_f32 v85, v85, v{F}'); rbf(85,85); e(f'v_mul_f32 v85, v85, v{Sg}'); rbf(Sg,85)
        if g==0: e('s_waitcnt vmcnt(0)')
        for r in range(4):
            x=20+2*g+r//2
            (lo if r%2==0 else hi)(84,x); e(f'v_add_f32 v{ACC[0]+4*g+r}, v84, v{ACC[0]+4*g+r}')
        e(f'v_cvt_pk_bf16_f32 v84, v{ACC[0]+4*g}, v{ACC[0]+4*g+1}'); e(f'v_cvt_pk_bf16_f32 v85, v{ACC[0]+4*g+2}, v{ACC[0]+4*g+3}')
        e(f'global_store_dwordx2 v5, v[84:85], s[10:11] offset:{16*g}'); e('s_nop 0')
    lab('k3_end'); e('s_endpgm')

def desc(K,vg):
    return f'''.amdhsa_kernel {K}
  .amdhsa_next_free_vgpr {vg}
  .amdhsa_next_free_sgpr 102
  .amdhsa_accum_offset {vg}
  .amdhsa_group_segment_fixed_size 0
  .amdhsa_kernarg_size 80
  .amdhsa_user_sgpr_count 2
  .amdhsa_user_sgpr_kernarg_segment_ptr 1
  .amdhsa_system_sgpr_workgroup_id_x 1
.end_amdhsa_kernel'''
hdr=open(f'cdna_kernels/{NAME}.s.ref').read().split('; @launch')[0]
k1(); k2(); k3()
out=hdr+f'''; @launch kernel=k1_kernel grid=(256,1,1) block=(512,1,1) lds=114688
; @launch kernel=k2_kernel grid=(512,1,1) block=(256,1,1) lds=24576
; @launch kernel={NAME}_kernel grid=(256,1,1) block=(256,1,1) lds=131072
.amdgcn_target "amdgcn-amd-amdhsa--gfx950"
.text
'''+'\n'.join(L)+'\n.section .rodata,"a"\n.p2align 6\n'+'\n'.join([desc('k1_kernel',256),'.p2align 6',desc('k2_kernel',256),'.p2align 6',desc(NAME+'_kernel',256)])+'\n'
open(f'cdna_kernels/{NAME}.s','w').write(out)
print(len(out))
```

```python
NAME='recurrent_scan__sliding_block__glu_gated_geglu__prompt'
L=[]
def e(s): L.append('  '+s)
def lab(s): L.append(s+':')
WS_QKV=0; WS_H=8<<20; WS_O=16<<20
LOG2E=1.4426950408889634
import struct
def f2u(f): return struct.unpack('<I',struct.pack('<f',f))[0]
def rbf(dst,src):
    e(f'v_cvt_pk_bf16_f32 v{dst}, v{src}, v{src}'); e(f'v_lshlrev_b32 v{dst}, 16, v{dst}')
def lo(d,s): e(f'v_lshlrev_b32 v{d}, 16, v{s}')
def hi(d,s): e(f'v_and_b32 v{d}, 0xffff0000, v{s}')

def k1():
    K='k1_kernel'
    L.append(f'.globl {K}\n.p2align 8\n.type {K},@function'); lab(K)
    ACC=100; XF=[180,184]; WF=[188,208]; XS=228
    MM=[236,237]; SQ=[238,239]; RI=[240,241]; XOFF=[242,243]; XW=[244,245]; XA=246; WA=90; DP=10
    WB=[0,40960]; XB=[81920,98304]
    e('s_cmp_ge_u32 s2, 256'); e('s_cbranch_scc1 k1_end')
    e('s_load_dwordx2 s[4:5], s[0:1], 0'); e('s_load_dwordx2 s[6:7], s[0:1], 8')
    e('s_load_dwordx4 s[8:11], s[0:1], 32'); e('s_load_dwordx2 s[12:13], s[0:1], 72')
    e('s_lshr_b32 s14, s2, 4'); e('s_and_b32 s15, s2, 15')
    e('v_and_b32 v1, 63, v0'); e('v_lshrrev_b32 v2, 6, v0'); e('s_nop 0'); e('v_readfirstlane_b32 s16, v2')
    e('s_lshl_b32 s17, s14, 7'); e('s_lshl_b32 s18, s16, 4'); e('s_add_u32 s17, s17, s18'); e('s_lshl_b32 s18, s17, 10')
    e('v_lshrrev_b32 v3, 3, v1'); e('v_and_b32 v4, 7, v1')
    e('v_lshlrev_b32 v5, 10, v3'); e('v_lshl_add_u32 v5, v4, 4, v5'); e(f'v_add_u32 v{XOFF[0]}, s18, v5'); e(f'v_add_u32 v{XOFF[1]}, 0x2000, v{XOFF[0]}')
    e('s_waitcnt lgkmcnt(0)')
    for i in range(2):
        for j in range(8):
            r=20+(i*8+j)*4
            e(f'global_load_dwordx4 v[{r}:{r+3}], v{XOFF[i]}, s[4:5] offset:{j*128}')
    e('v_lshrrev_b32 v6, 4, v1')
    for i in range(2):
        e(f'v_add_u32 v7, {4*i}, v6'); e('v_xor_b32 v7, v4, v7'); e('v_lshlrev_b32 v7, 4, v7')
        e('v_lshl_add_u32 v7, v3, 7, v7'); e(f's_lshl_b32 s19, s16, 11'); e(f's_add_u32 s19, s19, {XB[0]+i*1024}')
        e(f'v_add_u32 v{XW[i]}, s19, v7')
    e('s_and_b32 s20, s16, 3'); e('s_lshr_b32 s21, s16, 2')
    e('v_and_b32 v7, 31, v1'); e('v_lshlrev_b32 v7, 7, v7'); e('s_lshl_b32 s19, s20, 12'); e(f's_add_u32 s19, s19, {XB[0]}'); e('v_add_u32 v7, s19, v7')
    e('v_lshrrev_b32 v8, 1, v1'); e('v_and_b32 v8, 7, v8')
    e('v_lshrrev_b32 v9, 5, v1'); e('v_and_b32 v84, 1, v8'); e('v_xor_b32 v9, v9, v84')
    e('v_lshrrev_b32 v8, 1, v8')
    for s in range(4):
        e(f'v_xor_b32 v84, {s}, v8'); e('v_lshl_or_b32 v84, v84, 1, v9'); e(f'v_lshl_add_u32 v{XA+s}, v84, 4, v7')
    e('v_lshrrev_b32 v7, 4, v1'); e('v_and_b32 v8, 15, v1')
    e('v_lshrrev_b32 v9, 1, v7'); e('v_lshlrev_b32 v9, 3, v9'); e('v_lshrrev_b32 v84, 2, v8'); e('v_add_u32 v9, v9, v84'); e('v_lshlrev_b32 v9, 7, v9')
    e('v_and_b32 v84, 3, v8'); e('v_lshl_add_u32 v9, v84, 3, v9')
    e('v_and_b32 v84, 1, v7'); e('v_lshrrev_b32 v85, 3, v8')
    e('v_lshlrev_b32 v86, 1, v85')
    for pp in range(2):
        e(f'v_add_u32 v87, {2*pp}, v84'); e('v_xor_b32 v87, v87, v86'); e(f'v_lshl_add_u32 v{WA+pp}, v87, 5, v9')
    e('v_xor_b32 v86, 1, v84'); e('v_lshl_or_b32 v86, v86, 1, v85')
    e('v_lshl_add_u32 v9, v84, 13, v9'); e('v_add_u32 v9, 0x2000, v9')
    for p in range(4):
        e(f'v_xor_b32 v87, {p}, v86'); e(f'v_lshl_add_u32 v{WA+2+p}, v87, 5, v9')
    e('v_lshrrev_b32 v7, 3, v1'); e('v_and_b32 v8, 7, v1'); e('v_lshrrev_b32 v85, 4, v1'); e('v_and_b32 v85, 1, v85')
    e('s_mul_i32 s22, s16, 5')
    e('s_sub_u32 s24, s15, 14'); e('s_mul_i32 s24, s24, 5'); e('s_add_u32 s24, s24, 14'); e('s_cmp_lt_u32 s15, 14'); e('s_cselect_b32 s42, s15, s24')
    for i in range(5):
        e(f's_add_u32 s24, s22, {i}'); e('s_lshr_b32 s25, s24, 3'); e('s_and_b32 s26, s24, 7')
        e('s_and_b32 s28, s25, 1'); e('s_lshl_b32 s28, s28, 2'); e('s_cmp_eq_u32 s25, 0'); e('s_cselect_b32 s29, 2, 1'); e('s_cselect_b32 s28, 0, s28')
        e('v_mul_lo_u32 v86, v85, s29'); e('v_lshlrev_b32 v86, 1, v86'); e('v_or_b32 v86, s28, v86'); e('v_xor_b32 v86, v8, v86'); e('v_lshlrev_b32 v86, 4, v86')
        e('s_add_u32 s30, s42, s25'); e('s_lshl_b32 s30, s30, 7'); e('s_add_u32 s30, s6, s30'); e('s_addc_u32 s31, s7, 0')
        e('s_sub_u32 s32, s25, 1'); e('s_lshr_b32 s32, s32, 1'); e('s_lshl_b32 s33, s15, 1'); e('s_add_u32 s32, s32, s33'); e('s_lshl_b32 s32, s32, 7')
        e('s_bitcmp1_b32 s25, 0'); e('s_cselect_b32 s34, s8, s10'); e('s_cselect_b32 s35, s9, s11'); e('s_add_u32 s34, s34, s32'); e('s_addc_u32 s35, s35, 0')
        e('s_cmp_lg_u32 s25, 0'); e('s_cselect_b32 s27, 1, 0'); e('s_cmp_lt_u32 s15, 14'); e('s_cselect_b32 s27, s27, 0'); e('s_cmp_lg_u32 s27, 0')
        e('s_cselect_b32 s30, s34, s30'); e('s_cselect_b32 s31, s35, s31'); e('s_movk_i32 s27, 3584'); e('s_cselect_b32 s27, s27, 3072')
        e(f's_lshl_b32 s{44+i}, s27, 6')
        e('s_lshl_b32 s26, s26, 3'); e('v_add_u32 v9, s26, v7'); e('v_mul_lo_u32 v9, v9, s27'); e('v_add_u32 v9, v9, v86')
        e('v_mov_b32 v85, s31') if False else None
        e(f'v_add_co_u32 v{DP+2*i}, vcc, s30, v9'); e(f'v_mov_b32 v{DP+2*i+1}, s31'); e(f'v_addc_co_u32 v{DP+2*i+1}, vcc, 0, v{DP+2*i+1}, vcc')
    e('s_lshl_b32 s50, s22, 10')
    WAR=[250,251,252,253,254]
    srcs={0:[WA,WA+1,WA+2,WA+3,WA+4],1:[WA+5,WA+2,WA+3,WA+4,WA+5]}
    e('s_cmp_eq_u32 s21, 0'); e('s_cselect_b64 s[40:41], -1, 0')
    for tt in range(5):
        e(f'v_add_u32 v84, 0x4000, v{srcs[1][tt]}' if tt>0 else f'v_mov_b32 v84, v{srcs[1][tt]}')
        e(f'v_cndmask_b32 v{WAR[tt]}, v84, v{srcs[0][tt]}, s[40:41]')
    def dma(t):
        b=t%2
        for i in range(5):
            e(f's_add_u32 m0, s50, {WB[b]+i*1024}'); e('s_nop 0')
            e(f'global_load_lds_dwordx4 v[{DP+2*i}:{DP+2*i+1}], off')
            e(f'v_add_co_u32 v{DP+2*i}, vcc, s{44+i}, v{DP+2*i}'); e(f'v_addc_co_u32 v{DP+2*i+1}, vcc, 0, v{DP+2*i+1}, vcc')
    dma(0); dma(1)
    e('s_waitcnt vmcnt(10)')
    def red8(s):
        for d in ['quad_perm:[1,0,3,2]','quad_perm:[2,3,0,1]','row_half_mirror']:
            e('s_nop 1'); e(f'v_add_f32_dpp v{s}, v{s}, v{s} {d} row_mask:0xf bank_mask:0xf')
    for i in range(2):
        D=20+i*32
        e('v_mov_b32 v86, 0'); e('v_mov_b32 v87, 0'); e('s_mov_b32 s24, 0x3f803f80')
        for r in range(32):
            lo(84,D+r); hi(85,D+r); e('v_pk_add_f32 v[86:87], v[84:85], v[86:87]')
        e('v_add_f32 v86, v86, v87'); red8(86); e(f'v_mul_f32 v86, {f2u(1/512):#x}, v86'); e('v_mov_b32 v87, v86')
        e('v_mov_b32 v88, 0'); e('v_mov_b32 v89, 0')
        for r in range(32):
            lo(84,D+r); hi(85,D+r); e('v_pk_add_f32 v[84:85], v[84:85], v[86:87] neg_lo:[0,1] neg_hi:[0,1]'); e('v_pk_fma_f32 v[88:89], v[84:85], v[84:85], v[88:89]')
        e('v_add_f32 v87, v88, v89'); red8(87); e(f'v_mul_f32 v87, {f2u(1/512):#x}, v87')
        rbf(MM[i],86); rbf(87,87); e(f'v_add_f32 v87, {f2u(1e-5):#x}, v87'); rbf(87,87)
        e('v_sqrt_f32 v87, v87'); e('s_nop 0'); rbf(SQ[i],87); e(f'v_rcp_f32 v{RI[i]}, v{SQ[i]}'); e('s_nop 0')
    def xload(t):
        for i in range(2): e(f'global_load_dwordx4 v[{XS+4*i}:{XS+4*i+3}], v{XOFF[i]}, s[4:5] offset:{t*128}')
    def norm(t):
        S=L[:]; del L[:]
        for i in range(2):
            for r in range(4):
                x=20+(i*8+t)*4+r
                lo(84,x); hi(85,x); e(f'v_sub_f32 v84, v84, v{MM[i]}'); e(f'v_sub_f32 v85, v85, v{MM[i]}')
                e('v_cvt_pk_bf16_f32 v84, v84, v85'); hi(85,84); lo(84,84)
                e(f'v_mul_f32 v86, v84, v{RI[i]}'); e(f'v_mul_f32 v87, v85, v{RI[i]}')
                e(f'v_fma_f32 v84, -v86, v{SQ[i]}, v84'); e(f'v_fma_f32 v85, -v87, v{SQ[i]}, v85')
                e(f'v_fmac_f32 v86, v84, v{RI[i]}'); e(f'v_fmac_f32 v87, v85, v{RI[i]}')
                e(f'v_cvt_pk_bf16_f32 v{x}, v86, v87')
        out=L[:]; L[:]=S; return out
    def xwrite(t):
        for i in range(2): e(f'ds_write_b128 v{XW[i]}, v[{20+(i*8+t)*4}:{20+(i*8+t)*4+3}] offset:{(t%2)*16384}')
    def reads(t,s):
        b=t%2; p=s%2
        e(f'ds_read_b128 v[{XF[p]}:{XF[p]+3}], v{XA+s} offset:{b*16384}')
        for tt in range(5):
            for ee in range(2):
                r=WF[p]+tt*4+ee*2
                e(f'ds_read_b64_tr_b16 v[{r}:{r+1}], v{WAR[tt]} offset:{b*40960+s*2048+ee*512}')
    def mf(s,tt):
        p=s%2; a=ACC+16*tt
        e(f'v_mfma_f32_32x32x16_bf16 v[{a}:{a+15}], v[{WF[p]+tt*4}:{WF[p]+tt*4+3}], v[{XF[p]}:{XF[p]+3}], v[{a}:{a+15}]')
    for r in range(80): e(f'v_mov_b32 v{ACC+r}, 0')
    for s_ in norm(0): L.append(s_)
    xwrite(0)
    e('s_waitcnt vmcnt(0) lgkmcnt(0)'); e('s_barrier')
    reads(0,0)
    NS=8
    for t in range(NS):
        for s in range(4):
            if s<3:
                if s==2 and t+1<NS: xwrite(t+1)
                reads(t,s+1); e('s_waitcnt lgkmcnt(11)')
            else:
                e('s_waitcnt vmcnt(0) lgkmcnt(0)'); e('s_barrier')
                if t+2<NS: dma(t+2)
                if t+1<NS: reads(t+1,0)
            nl=norm(t+1) if (s==1 and t+1<NS) else []
            ch=(len(nl)+4)//5
            for tt in range(5):
                mf(s,tt)
                for s_ in nl[tt*ch:(tt+1)*ch]: L.append(s_)
    e('s_nop 15'); e('s_nop 3')
    e('v_and_b32 v3, 31, v1'); e('v_lshrrev_b32 v4, 5, v1')
    e('s_lshl_b32 s17, s14, 7'); e('s_lshl_b32 s18, s20, 5'); e('s_add_u32 s17, s17, s18'); e('v_add_u32 v3, s17, v3')
    e('v_lshlrev_b32 v5, 5, v3'); e('v_lshl_add_u32 v5, v4, 3, v5'); e('v_add_u32 v6, 0x10000, v5')
    e('s_movk_i32 s24, 3584'); e('v_mul_lo_u32 v7, v3, s24'); e('v_lshl_add_u32 v7, v4, 3, v7')
    e(f's_add_u32 s36, s12, {WS_H}'); e('s_addc_u32 s37, s13, 0')
    e(f's_mov_b32 s38, {f2u(-2*0.7978845608028654*LOG2E):#x}'); e(f's_mov_b32 s39, {f2u(-2*0.7978845608028654*LOG2E*0.044715):#x}')
    e('s_lshl_b32 s43, s42, 2')
    for tt in range(5):
        a=ACC+16*tt
        e('s_mul_i32 s25, s21, 5'); e(f's_add_u32 s25, s25, {tt}')
        e('s_cmp_lt_u32 s25, 2'); e(f's_cbranch_scc1 k1_pl{tt}')
        e('s_cmp_lt_u32 s15, 14'); e(f's_cbranch_scc1 k1_ffn{tt}')
        e('s_sub_u32 s26, s25, 2'); e('s_lshr_b32 s27, s26, 2'); e('s_and_b32 s26, s26, 3'); e('s_lshl_b32 s27, s27, 3'); e('s_add_u32 s26, s26, s27'); e('s_add_u32 s26, s26, s43'); e('s_add_u32 s26, s26, 4'); e('s_add_u32 s27, s26, 4')
        e(f's_branch k1_q{tt}')
        lab(f'k1_pl{tt}'); e('s_lshl_b32 s26, s25, 1'); e('s_add_u32 s26, s26, s43'); e('s_add_u32 s27, s26, 1')
        lab(f'k1_q{tt}')
        e('s_lshl_b32 s26, s26, 16'); e('s_lshl_b32 s27, s27, 16'); e('s_add_u32 s28, s12, s26'); e('s_addc_u32 s29, s13, 0'); e('s_add_u32 s30, s12, s27'); e('s_addc_u32 s31, s13, 0')
        for g in range(4):
            e(f'v_cvt_pk_bf16_f32 v84, v{a+4*g}, v{a+4*g+1}'); e(f'v_cvt_pk_bf16_f32 v85, v{a+4*g+2}, v{a+4*g+3}')
            e(f'global_store_dwordx2 v5, v[84:85], s[{28+2*(g>>1)}:{29+2*(g>>1)}] offset:{(g&1)*16}')
            e('s_nop 0')
        e(f's_branch k1_nx{tt}')
        lab(f'k1_ffn{tt}')
        e('s_sub_u32 s26, s25, 2'); e('s_lshl_b32 s26, s26, 5'); e('s_lshl_b32 s27, s15, 8'); e('s_add_u32 s26, s26, s27'); e('v_add_u32 v8, s26, v7')
        for g in range(2):
            for r in range(4):
                G=a+4*g+r; U=a+8+4*g+r; T=86+r
                rbf(G,G); rbf(U,U)
                e(f'v_mul_f32 v84, v{G}, v{G}')
                e(f'v_mov_b32 v85, s38'); e(f'v_fmac_f32 v85, s39, v84'); e(f'v_mul_f32 v85, v85, v{G}')
                e('v_exp_f32 v85, v85'); e('s_nop 0'); e('v_add_f32 v85, 1.0, v85'); e('v_rcp_f32 v85, v85'); e('s_nop 0')
                e(f'v_mul_f32 v85, v85, v{G}'); rbf(85,85); e(f'v_mul_f32 v{T}, v85, v{U}')
            e('v_cvt_pk_bf16_f32 v84, v86, v87'); e('v_cvt_pk_bf16_f32 v85, v88, v89')
            e(f'global_store_dwordx2 v8, v[84:85], s[36:37] offset:{g*16}')
            e('s_nop 0')
        lab(f'k1_nx{tt}')
    lab('k1_end'); e('s_endpgm')

def k2():
    K='k2_kernel'
    L.append(f'.globl {K}\n.p2align 8\n.type {K},@function'); lab(K)
    S=100; KF=20; QF=56; VF=[60,64]; O=68
    e('s_cmp_ge_u32 s2, 512'); e('s_cbranch_scc1 k2_end')
    e('s_load_dwordx2 s[12:13], s[0:1], 72')
    e('s_lshr_b32 s14, s2, 4'); e('s_and_b32 s15, s2, 15')
    e('v_and_b32 v1, 63, v0'); e('v_lshrrev_b32 v2, 6, v0'); e('s_nop 0'); e('v_readfirstlane_b32 s16, v2')
    e('s_lshl_b32 s17, s15, 7'); e('s_lshl_b32 s18, s14, 11')
    e('v_lshrrev_b32 v3, 1, v1'); e('v_and_b32 v4, 1, v1')
    e('s_waitcnt lgkmcnt(0)')
    e(f's_add_u32 s20, s12, {2<<20}'); e('s_addc_u32 s21, s13, 0'); e(f's_add_u32 s22, s12, {4<<20}'); e('s_addc_u32 s23, s13, 0')
    for c in range(3):
        e(f's_add_u32 s24, s16, {4*c}'); e('s_lshl_b32 s25, s24, 5'); e('s_add_u32 s25, s25, s17'); e('s_sub_u32 s25, s25, 256')
        e('v_add_u32 v5, s25, v3'); e('v_max_i32 v5, 0, v5'); e('v_add_u32 v5, s18, v5'); e('v_lshlrev_b32 v5, 5, v5'); e('v_lshl_add_u32 v5, v4, 4, v5')
        e('s_lshl_b32 m0, s24, 10'); e('s_nop 0'); e('global_load_lds_dwordx4 v5, s[20:21]')
        e('s_lshl_b32 s24, s24, 10'); e('s_add_u32 m0, s24, 12288'); e('s_nop 0'); e('global_load_lds_dwordx4 v5, s[22:23]')
    e('v_and_b32 v6, 31, v1'); e('v_lshrrev_b32 v7, 5, v1')
    e('s_lshl_b32 s24, s16, 5'); e('s_add_u32 s25, s24, s17')
    e('s_add_u32 s26, s25, s18'); e('v_add_u32 v8, s26, v6'); e('v_lshlrev_b32 v8, 5, v8'); e('v_lshl_add_u32 v8, v7, 4, v8')
    e(f'global_load_dwordx4 v[{QF}:{QF+3}], v8, s[12:13]')
    e('v_add_u32 v9, s24, v6'); e('v_lshlrev_b32 v9, 5, v9'); e('v_lshl_add_u32 v9, v7, 4, v9')
    e('v_and_b32 v84, 15, v1'); e('v_lshrrev_b32 v85, 2, v84'); e('v_lshl_add_u32 v85, v7, 2, v85'); e('v_add_u32 v85, s24, v85'); e('v_lshlrev_b32 v85, 5, v85')
    e('v_and_b32 v84, 3, v84'); e('v_lshl_add_u32 v10, v84, 3, v85'); e('v_add_u32 v10, 0x3000, v10')
    e('v_lshlrev_b32 v84, 2, v7'); e('v_sub_u32 v11, v6, v84')
    e('v_mov_b32 v12, 0xff800000')
    e('s_lshr_b32 s27, s25, 5'); e('s_sub_u32 s27, 8, s27'); e('s_cmp_lt_u32 s25, 256'); e('s_cselect_b32 s27, s27, 0')
    e(f's_mov_b32 s28, {f2u(0.25*LOG2E):#x}')
    e('s_waitcnt vmcnt(0)'); e('s_barrier')
    for t in range(9): e(f'ds_read_b128 v[{KF+4*t}:{KF+4*t+3}], v9 offset:{t*1024}')
    for t in range(9):
        e(f's_waitcnt lgkmcnt({8-t})')
        e(f'v_mfma_f32_32x32x16_bf16 v[{S+16*t}:{S+16*t+15}], v[{KF+4*t}:{KF+4*t+3}], v[{QF}:{QF+3}], 0')
    e('s_nop 15')
    for t in range(9):
        b=S+16*t
        for r in range(0,16,2):
            e(f'v_cvt_pk_bf16_f32 v84, v{b+r}, v{b+r+1}'); lo(b+r,84); hi(b+r+1,84)
        if t in (0,8):
            for r0 in range(0,16,4):
                for r in range(r0,r0+4):
                    ko=(r//4)*8+r%4
                    e(f'v_cmp_{"gt" if t==0 else "le"}_i32 s[{40+2*(r%4)}:{41+2*(r%4)}], {ko}, v11')
                for r in range(r0,r0+4):
                    e(f'v_cndmask_b32 v{b+r}, v12, v{b+r}, s[{40+2*(r%4)}:{41+2*(r%4)}]')
        if t<8:
            e(f's_cmp_lt_u32 {t}, s27'); e(f's_cbranch_scc0 k2_sk{t}')
            for r in range(16): e(f'v_mov_b32 v{b+r}, v12')
            lab(f'k2_sk{t}')
    e(f'v_max_f32 v84, v{S}, v{S+1}')
    for r in range(2,144,2): e(f'v_max3_f32 v84, v84, v{S+r}, v{S+r+1}')
    e('v_mov_b32 v85, v84'); e('s_nop 1'); e('v_permlane32_swap_b32 v84, v85'); e('v_max_f32 v84, v84, v85'); e('v_mul_f32 v84, s28, v84')
    e('v_mov_b32 v86, 0'); e('v_mov_b32 v87, 0')
    for r in range(144):
        e(f'v_fma_f32 v{S+r}, v{S+r}, s28, -v84'); e(f'v_exp_f32 v{S+r}, v{S+r}')
    e('s_nop 0')
    for r in range(0,144,2): e(f'v_add_f32 v86, v86, v{S+r}'); e(f'v_add_f32 v87, v87, v{S+r+1}')
    e('v_add_f32 v86, v86, v87'); e('v_mov_b32 v85, v86'); e('s_nop 1'); e('v_permlane32_swap_b32 v86, v85'); e('v_add_f32 v86, v86, v85')
    e('v_rcp_f32 v86, v86'); e('s_nop 0')
    for r in range(0,144,2):
        e(f'v_mul_f32 v{S+r}, v{S+r}, v86'); e(f'v_mul_f32 v{S+r+1}, v{S+r+1}, v86'); e(f'v_cvt_pk_bf16_f32 v{S+r//2}, v{S+r}, v{S+r+1}')
    def vread(u):
        t,hf=divmod(u,2); p=u%2
        for ee in range(2): e(f'ds_read_b64_tr_b16 v[{VF[p]+2*ee}:{VF[p]+2*ee+1}], v10 offset:{t*1024+hf*512+ee*256}')
    vread(0)
    for u in range(18):
        if u<17: vread(u+1); e('s_waitcnt lgkmcnt(2)')
        else: e('s_waitcnt lgkmcnt(0)')
        c='0' if u==0 else f'v[{O}:{O+15}]'
        e(f'v_mfma_f32_32x32x16_bf16 v[{O}:{O+15}], v[{VF[u%2]}:{VF[u%2]+3}], v[{S+4*u}:{S+4*u+3}], {c}')
    e('s_nop 15'); e('s_nop 3')
    e('v_add_u32 v8, s25, v6'); e('v_lshlrev_b32 v8, 10, v8'); e('v_lshl_add_u32 v8, v7, 3, v8'); e('s_lshl_b32 s26, s14, 5'); e('v_add_u32 v8, s26, v8')
    e(f's_add_u32 s20, s12, {WS_O}'); e('s_addc_u32 s21, s13, 0')
    for g in range(2):
        e(f'v_cvt_pk_bf16_f32 v84, v{O+4*g}, v{O+4*g+1}'); e(f'v_cvt_pk_bf16_f32 v85, v{O+4*g+2}, v{O+4*g+3}')
        e(f'global_store_dwordx2 v8, v[84:85], s[20:21] offset:{16*g}'); e('s_nop 0')
    lab('k2_end'); e('s_endpgm')

def k3():
    K=NAME+'_kernel'
    L.append(f'.globl {K}\n.p2align 8\n.type {K},@function'); lab(K)
    ACC=[100,116]; AF=[20,24,28,32]; WF=[36,40,44,48]; AA=[150,154]; WA=[158,159]; AO=[160,162]; WO=164
    NB=2; R=5; GS=170; PS=4
    e('s_cmp_ge_u32 s2, 256'); e('s_cbranch_scc1 k3_end')
    e('s_load_dwordx2 s[4:5], s[0:1], 0'); e('s_load_dwordx2 s[6:7], s[0:1], 16'); e('s_load_dwordx2 s[8:9], s[0:1], 48')
    e('s_load_dwordx2 s[10:11], s[0:1], 56'); e('s_load_dwordx2 s[12:13], s[0:1], 72')
    e('s_and_b32 s14, s2, 7'); e('s_lshl_b32 s14, s14, 2'); e('s_lshr_b32 s15, s2, 6'); e('s_add_u32 s14, s14, s15'); e('s_lshr_b32 s15, s2, 3'); e('s_and_b32 s15, s15, 7')
    e('v_and_b32 v1, 63, v0'); e('v_lshrrev_b32 v2, 6, v0'); e('s_nop 0'); e('v_readfirstlane_b32 s16, v2')
    e('s_and_b32 s20, s16, 1'); e('s_lshr_b32 s21, s16, 1')
    e('v_lshrrev_b32 v3, 5, v1'); e('v_and_b32 v4, 31, v1')
    e('s_lshl_b32 s17, s14, 6'); e('s_lshl_b32 s18, s16, 4'); e('s_add_u32 s17, s17, s18'); e('v_lshrrev_b32 v5, 3, v1'); e('v_add_u32 v5, s17, v5')
    e('v_lshrrev_b32 v8, 4, v1'); e('v_and_b32 v9, 7, v1')
    for c in range(2):
        e(f'v_add_u32 v6, {4*c}, v8'); e('v_xor_b32 v6, v9, v6'); e('v_lshlrev_b32 v6, 4, v6')
        e(f'v_add_u32 v7, {8*c}, v5'); e(f'v_lshl_add_u32 v{AO[0]+c}, v7, 10, v6')
        e('s_movk_i32 s24, 3584'); e('v_mul_lo_u32 v7, v7, s24'); e(f'v_add_u32 v{AO[1]+c}, v7, v6')
    e('v_lshrrev_b32 v6, 3, v1'); e('v_lshrrev_b32 v7, 1, v6'); e('v_and_b32 v7, 1, v7'); e('v_lshlrev_b32 v7, 2, v7'); e('v_and_b32 v8, 7, v1'); e('v_xor_b32 v7, v7, v8')
    e('s_lshl_b32 s24, s16, 4'); e('v_add_u32 v6, s24, v6'); e('v_lshlrev_b32 v6, 10, v6'); e('v_lshl_add_u32 v6, v7, 4, v6'); e('s_lshl_b32 s24, s15, 7'); e(f'v_add_u32 v{WO}, s24, v6')
    e('s_lshl_b32 s24, s20, 5'); e('v_add_u32 v6, s24, v4'); e('v_lshlrev_b32 v7, 7, v6')
    e('v_lshrrev_b32 v8, 1, v1'); e('v_and_b32 v8, 7, v8'); e('v_and_b32 v84, 1, v8'); e('v_xor_b32 v9, v3, v84'); e('v_lshrrev_b32 v8, 1, v8')
    for s in range(4):
        e(f'v_xor_b32 v84, {s}, v8'); e('v_lshl_or_b32 v84, v84, 1, v9'); e(f'v_lshl_add_u32 v{AA[0]+s}, v84, 4, v7'); e(f'v_add_u32 v{AA[1]+s}, 0x10000, v{AA[0]+s}')
    e('v_lshrrev_b32 v7, 4, v1'); e('v_and_b32 v8, 15, v1')
    e('v_lshrrev_b32 v9, 1, v7'); e('v_lshlrev_b32 v9, 3, v9'); e('v_lshrrev_b32 v84, 2, v8'); e('v_add_u32 v9, v9, v84'); e('v_lshlrev_b32 v9, 7, v9')
    e('v_and_b32 v84, 1, v7'); e('v_lshl_add_u32 v9, v84, 5, v9'); e('v_and_b32 v84, 3, v8'); e('v_lshl_add_u32 v9, v84, 3, v9')
    e('v_lshrrev_b32 v84, 3, v8'); e('v_xor_b32 v84, s21, v84'); e('v_lshl_add_u32 v9, v84, 6, v9')
    e(f'v_add_u32 v{WA[0]}, 0x2000, v9'); e(f'v_add_u32 v{WA[1]}, 0x10000, v{WA[0]}')
    e('s_waitcnt lgkmcnt(0)')
    e('s_lshl_b32 s22, s16, 11')
    e('s_lshl_b32 s23, s16, 11'); e('s_add_u32 s23, s23, 8192')
    e('v_lshlrev_b32 v165, 4, v1'); e('v_add_u32 v166, s22, v165'); e('v_add_u32 v165, s23, v165')
    def gl(t):
        g=GS+(t%R)*16
        if t<8: ab=WS_O+t*128; wlo,whi='s6','s7'; wk=t*64; ao=AO[0]
        else: ab=WS_H+(t-8)*128; wlo,whi='s8','s9'; wk=(t-8)*64; ao=AO[1]
        e(f's_add_u32 s30, s12, {ab}'); e('s_addc_u32 s31, s13, 0')
        for c in range(2): e(f'global_load_dwordx4 v[{g+4*c}:{g+4*c+3}], v{ao+c}, s[30:31]')
        for c in range(2):
            e(f's_add_u32 s32, {wlo}, {(wk+c*8)*1024}'); e(f's_addc_u32 s33, {whi}, 0')
            e(f'global_load_dwordx4 v[{g+8+4*c}:{g+8+4*c+3}], v{WO}, s[32:33]')
    Q=[]
    def wfor(tag):
        idx=max(i for i,x in enumerate(Q) if x==tag); e(f's_waitcnt lgkmcnt({len(Q)-1-idx})')
    def dw(t):
        Q.extend([None]*4)
        g=GS+(t%R)*16; b=t%NB
        for c in range(2): e(f'ds_write_b128 v166, v[{g+4*c}:{g+4*c+3}] offset:{b*16384+c*1024}')
        for c in range(2): e(f'ds_write_b128 v165, v[{g+8+4*c}:{g+8+4*c+3}] offset:{b*16384+c*1024}')
    def reads(t,s):
        b=t%NB; p=(4*t+s)%4; hb=b//4; ob=(b%4)*16384; Q.extend([(t,s)]*3)
        e(f'ds_read_b128 v[{AF[p]}:{AF[p]+3}], v{AA[hb]+s} offset:{ob}')
        for ee in range(2):
            e(f'ds_read_b64_tr_b16 v[{WF[p]+2*ee}:{WF[p]+2*ee+1}], v{WA[hb]} offset:{ob+s*2048+ee*512}')
    for r in range(32): e(f'v_mov_b32 v{ACC[0]+r}, 0')
    for t in range(R): gl(t)
    e(f's_waitcnt vmcnt({PS*(R-1)})'); dw(0); e('s_waitcnt lgkmcnt(0)'); e('s_barrier'); gl(R)
    NS=36
    reads(0,0); reads(0,1)
    for t in range(NS):
        a=ACC[0] if t<8 else ACC[1]
        for s in range(4):
            if s<2: reads(t,s+2)
            if s==1 and t+1<NS:
                rem=min(NS-1,t+R)-(t+1)
                e(f's_waitcnt vmcnt({PS*rem})'); dw(t+1)
            if s==2:
                e('s_waitcnt lgkmcnt(0)'); e('s_barrier'); del Q[:]
                if t+1<NS: reads(t+1,0)
            if s==3:
                if t+1+R<NS: gl(t+1+R)
                if t+1<NS: reads(t+1,1)
            if s<2: wfor((t,s))
            p=(4*t+s)%4
            e(f'v_mfma_f32_32x32x16_bf16 v[{a}:{a+15}], v[{WF[p]}:{WF[p]+3}], v[{AF[p]}:{AF[p]+3}], v[{a}:{a+15}]')
    e('s_nop 15'); e('s_nop 3')
    e('s_lshl_b32 s17, s14, 6'); e('s_lshl_b32 s18, s20, 5'); e('s_add_u32 s17, s17, s18'); e('v_add_u32 v5, s17, v4'); e('v_lshlrev_b32 v5, 10, v5')
    e('v_lshl_add_u32 v5, v3, 3, v5'); e('s_lshl_b32 s24, s15, 7'); e('s_lshl_b32 s25, s21, 6'); e('s_add_u32 s24, s24, s25'); e('v_add_u32 v5, s24, v5')
    for g in range(4): e(f'global_load_dwordx2 v[{20+2*g}:{21+2*g}], v5, s[4:5] offset:{16*g}')
    e(f's_mov_b32 s38, {f2u(-LOG2E):#x}')
    for g in range(4):
        for r in range(4):
            Sg=ACC[0]+4*g+r; F=ACC[1]+4*g+r
            rbf(Sg,Sg); rbf(F,F)
            e(f'v_mul_f32 v85, s38, v{F}'); e('v_exp_f32 v85, v85'); e('s_nop 0'); e('v_add_f32 v85, 1.0, v85'); e('v_rcp_f32 v85, v85'); e('s_nop 0')
            e(f'v_mul_f32 v85, v85, v{F}'); rbf(85,85); e(f'v_mul_f32 v85, v85, v{Sg}'); rbf(Sg,85)
        if g==0: e('s_waitcnt vmcnt(0)')
        for r in range(4):
            x=20+2*g+r//2
            (lo if r%2==0 else hi)(84,x); e(f'v_add_f32 v{ACC[0]+4*g+r}, v84, v{ACC[0]+4*g+r}')
        e(f'v_cvt_pk_bf16_f32 v84, v{ACC[0]+4*g}, v{ACC[0]+4*g+1}'); e(f'v_cvt_pk_bf16_f32 v85, v{ACC[0]+4*g+2}, v{ACC[0]+4*g+3}')
        e(f'global_store_dwordx2 v5, v[84:85], s[10:11] offset:{16*g}'); e('s_nop 0')
    lab('k3_end'); e('s_endpgm')

def desc(K,vg):
    return f'''.amdhsa_kernel {K}
  .amdhsa_next_free_vgpr {vg}
  .amdhsa_next_free_sgpr 102
  .amdhsa_accum_offset {vg}
  .amdhsa_group_segment_fixed_size 0
  .amdhsa_kernarg_size 80
  .amdhsa_user_sgpr_count 2
  .amdhsa_user_sgpr_kernarg_segment_ptr 1
  .amdhsa_system_sgpr_workgroup_id_x 1
.end_amdhsa_kernel'''
hdr=open(f'cdna_kernels/{NAME}.s.ref').read().split('; @launch')[0]
k1(); k2(); k3()
out=hdr+f'''; @launch kernel=k1_kernel grid=(256,1,1) block=(512,1,1) lds=114688
; @launch kernel=k2_kernel grid=(512,1,1) block=(256,1,1) lds=24576
; @launch kernel={NAME}_kernel grid=(256,1,1) block=(256,1,1) lds=131072
.amdgcn_target "amdgcn-amd-amdhsa--gfx950"
.text
'''+'\n'.join(L)+'\n.section .rodata,"a"\n.p2align 6\n'+'\n'.join([desc('k1_kernel',256),'.p2align 6',desc('k2_kernel',256),'.p2align 6',desc(NAME+'_kernel',256)])+'\n'
open(f'cdna_kernels/{NAME}.s','w').write(out)
print(len(out))
```

```python
NAME='recurrent_scan__sliding_block__glu_gated_geglu__prompt'
L=[]
def e(s): L.append('  '+s)
def lab(s): L.append(s+':')
WS_QKV=0; WS_H=8<<20; WS_O=16<<20
LOG2E=1.4426950408889634
import struct
def f2u(f): return struct.unpack('<I',struct.pack('<f',f))[0]
def rbf(dst,src):
    e(f'v_cvt_pk_bf16_f32 v{dst}, v{src}, v{src}'); e(f'v_lshlrev_b32 v{dst}, 16, v{dst}')
def lo(d,s): e(f'v_lshlrev_b32 v{d}, 16, v{s}')
def hi(d,s): e(f'v_and_b32 v{d}, 0xffff0000, v{s}')

def k1():
    K='k1_kernel'
    L.append(f'.globl {K}\n.p2align 8\n.type {K},@function'); lab(K)
    ACC=100; XF=[180,184]; WF=[188,208]; XS=228
    MM=[236,237]; SQ=[238,239]; RI=[240,241]; XOFF=[242,243]; XW=[244,245]; XA=246; WA=90; DP=10
    WB=[0,40960]; XB=[81920,98304]
    e('s_cmp_ge_u32 s2, 256'); e('s_cbranch_scc1 k1_end')
    e('s_load_dwordx2 s[4:5], s[0:1], 0'); e('s_load_dwordx2 s[6:7], s[0:1], 8')
    e('s_load_dwordx4 s[8:11], s[0:1], 32'); e('s_load_dwordx2 s[12:13], s[0:1], 72')
    e('s_lshr_b32 s14, s2, 4'); e('s_and_b32 s15, s2, 15')
    e('v_and_b32 v1, 63, v0'); e('v_lshrrev_b32 v2, 6, v0'); e('s_nop 0'); e('v_readfirstlane_b32 s16, v2')
    e('s_lshl_b32 s17, s14, 7'); e('s_lshl_b32 s18, s16, 4'); e('s_add_u32 s17, s17, s18'); e('s_lshl_b32 s18, s17, 10')
    e('v_lshrrev_b32 v3, 3, v1'); e('v_and_b32 v4, 7, v1')
    e('v_lshlrev_b32 v5, 10, v3'); e('v_lshl_add_u32 v5, v4, 4, v5'); e(f'v_add_u32 v{XOFF[0]}, s18, v5'); e(f'v_add_u32 v{XOFF[1]}, 0x2000, v{XOFF[0]}')
    e('s_waitcnt lgkmcnt(0)')
    for i in range(2):
        for j in range(8):
            r=20+(i*8+j)*4
            e(f'global_load_dwordx4 v[{r}:{r+3}], v{XOFF[i]}, s[4:5] offset:{j*128}')
    e('v_lshrrev_b32 v6, 4, v1')
    for i in range(2):
        e(f'v_add_u32 v7, {4*i}, v6'); e('v_xor_b32 v7, v4, v7'); e('v_lshlrev_b32 v7, 4, v7')
        e('v_lshl_add_u32 v7, v3, 7, v7'); e(f's_lshl_b32 s19, s16, 11'); e(f's_add_u32 s19, s19, {XB[0]+i*1024}')
        e(f'v_add_u32 v{XW[i]}, s19, v7')
    e('s_and_b32 s20, s16, 3'); e('s_lshr_b32 s21, s16, 2')
    e('v_and_b32 v7, 31, v1'); e('v_lshlrev_b32 v7, 7, v7'); e('s_lshl_b32 s19, s20, 12'); e(f's_add_u32 s19, s19, {XB[0]}'); e('v_add_u32 v7, s19, v7')
    e('v_lshrrev_b32 v8, 1, v1'); e('v_and_b32 v8, 7, v8')
    e('v_lshrrev_b32 v9, 5, v1'); e('v_and_b32 v84, 1, v8'); e('v_xor_b32 v9, v9, v84')
    e('v_lshrrev_b32 v8, 1, v8')
    for s in range(4):
        e(f'v_xor_b32 v84, {s}, v8'); e('v_lshl_or_b32 v84, v84, 1, v9'); e(f'v_lshl_add_u32 v{XA+s}, v84, 4, v7')
    e('v_lshrrev_b32 v7, 4, v1'); e('v_and_b32 v8, 15, v1')
    e('v_lshrrev_b32 v9, 1, v7'); e('v_lshlrev_b32 v9, 3, v9'); e('v_lshrrev_b32 v84, 2, v8'); e('v_add_u32 v9, v9, v84'); e('v_lshlrev_b32 v9, 7, v9')
    e('v_and_b32 v84, 3, v8'); e('v_lshl_add_u32 v9, v84, 3, v9')
    e('v_and_b32 v84, 1, v7'); e('v_lshrrev_b32 v85, 3, v8')
    e('v_lshlrev_b32 v86, 1, v85')
    for pp in range(2):
        e(f'v_add_u32 v87, {2*pp}, v84'); e('v_xor_b32 v87, v87, v86'); e(f'v_lshl_add_u32 v{WA+pp}, v87, 5, v9')
    e('v_xor_b32 v86, 1, v84'); e('v_lshl_or_b32 v86, v86, 1, v85')
    e('v_lshl_add_u32 v9, v84, 13, v9'); e('v_add_u32 v9, 0x2000, v9')
    for p in range(4):
        e(f'v_xor_b32 v87, {p}, v86'); e(f'v_lshl_add_u32 v{WA+2+p}, v87, 5, v9')
    e('v_lshrrev_b32 v7, 3, v1'); e('v_and_b32 v8, 7, v1'); e('v_lshrrev_b32 v85, 4, v1'); e('v_and_b32 v85, 1, v85')
    e('s_mul_i32 s22, s16, 5')
    e('s_sub_u32 s24, s15, 14'); e('s_mul_i32 s24, s24, 5'); e('s_add_u32 s24, s24, 14'); e('s_cmp_lt_u32 s15, 14'); e('s_cselect_b32 s42, s15, s24')
    for i in range(5):
        e(f's_add_u32 s24, s22, {i}'); e('s_lshr_b32 s25, s24, 3'); e('s_and_b32 s26, s24, 7')
        e('s_and_b32 s28, s25, 1'); e('s_lshl_b32 s28, s28, 2'); e('s_cmp_eq_u32 s25, 0'); e('s_cselect_b32 s29, 2, 1'); e('s_cselect_b32 s28, 0, s28')
        e('v_mul_lo_u32 v86, v85, s29'); e('v_lshlrev_b32 v86, 1, v86'); e('v_or_b32 v86, s28, v86'); e('v_xor_b32 v86, v8, v86'); e('v_lshlrev_b32 v86, 4, v86')
        e('s_add_u32 s30, s42, s25'); e('s_lshl_b32 s30, s30, 7'); e('s_add_u32 s30, s6, s30'); e('s_addc_u32 s31, s7, 0')
        e('s_sub_u32 s32, s25, 1'); e('s_lshr_b32 s32, s32, 1'); e('s_lshl_b32 s33, s15, 1'); e('s_add_u32 s32, s32, s33'); e('s_lshl_b32 s32, s32, 7')
        e('s_bitcmp1_b32 s25, 0'); e('s_cselect_b32 s34, s8, s10'); e('s_cselect_b32 s35, s9, s11'); e('s_add_u32 s34, s34, s32'); e('s_addc_u32 s35, s35, 0')
        e('s_cmp_lg_u32 s25, 0'); e('s_cselect_b32 s27, 1, 0'); e('s_cmp_lt_u32 s15, 14'); e('s_cselect_b32 s27, s27, 0'); e('s_cmp_lg_u32 s27, 0')
        e('s_cselect_b32 s30, s34, s30'); e('s_cselect_b32 s31, s35, s31'); e('s_movk_i32 s27, 3584'); e('s_cselect_b32 s27, s27, 3072')
        e(f's_lshl_b32 s{44+i}, s27, 6')
        e('s_lshl_b32 s26, s26, 3'); e('v_add_u32 v9, s26, v7'); e('v_mul_lo_u32 v9, v9, s27'); e('v_add_u32 v9, v9, v86')
        e('v_mov_b32 v85, s31') if False else None
        e(f'v_add_co_u32 v{DP+2*i}, vcc, s30, v9'); e(f'v_mov_b32 v{DP+2*i+1}, s31'); e(f'v_addc_co_u32 v{DP+2*i+1}, vcc, 0, v{DP+2*i+1}, vcc')
    e('s_lshl_b32 s50, s22, 10')
    WAR=[250,251,252,253,254]
    srcs={0:[WA,WA+1,WA+2,WA+3,WA+4],1:[WA+5,WA+2,WA+3,WA+4,WA+5]}
    e('s_cmp_eq_u32 s21, 0'); e('s_cselect_b64 s[40:41], -1, 0')
    for tt in range(5):
        e(f'v_add_u32 v84, 0x4000, v{srcs[1][tt]}' if tt>0 else f'v_mov_b32 v84, v{srcs[1][tt]}')
        e(f'v_cndmask_b32 v{WAR[tt]}, v84, v{srcs[0][tt]}, s[40:41]')
    def dma(t):
        b=t%2
        for i in range(5):
            e(f's_add_u32 m0, s50, {WB[b]+i*1024}'); e('s_nop 0')
            e(f'global_load_lds_dwordx4 v[{DP+2*i}:{DP+2*i+1}], off')
            e(f'v_add_co_u32 v{DP+2*i}, vcc, s{44+i}, v{DP+2*i}'); e(f'v_addc_co_u32 v{DP+2*i+1}, vcc, 0, v{DP+2*i+1}, vcc')
    dma(0); dma(1)
    e('s_waitcnt vmcnt(10)')
    def red8(s):
        for d in ['quad_perm:[1,0,3,2]','quad_perm:[2,3,0,1]','row_half_mirror']:
            e('s_nop 1'); e(f'v_add_f32_dpp v{s}, v{s}, v{s} {d} row_mask:0xf bank_mask:0xf')
    for i in range(2):
        D=20+i*32
        e('v_mov_b32 v86, 0'); e('v_mov_b32 v87, 0'); e('s_mov_b32 s24, 0x3f803f80')
        for r in range(32):
            lo(84,D+r); hi(85,D+r); e('v_pk_add_f32 v[86:87], v[84:85], v[86:87]')
        e('v_add_f32 v86, v86, v87'); red8(86); e(f'v_mul_f32 v86, {f2u(1/512):#x}, v86'); e('v_mov_b32 v87, v86')
        e('v_mov_b32 v88, 0'); e('v_mov_b32 v89, 0')
        for r in range(32):
            lo(84,D+r); hi(85,D+r); e('v_pk_add_f32 v[84:85], v[84:85], v[86:87] neg_lo:[0,1] neg_hi:[0,1]'); e('v_pk_fma_f32 v[88:89], v[84:85], v[84:85], v[88:89]')
        e('v_add_f32 v87, v88, v89'); red8(87); e(f'v_mul_f32 v87, {f2u(1/512):#x}, v87')
        rbf(MM[i],86); rbf(87,87); e(f'v_add_f32 v87, {f2u(1e-5):#x}, v87'); rbf(87,87)
        e('v_sqrt_f32 v87, v87'); e('s_nop 0'); rbf(SQ[i],87); e(f'v_rcp_f32 v{RI[i]}, v{SQ[i]}'); e('s_nop 0')
    def xload(t):
        for i in range(2): e(f'global_load_dwordx4 v[{XS+4*i}:{XS+4*i+3}], v{XOFF[i]}, s[4:5] offset:{t*128}')
    def norm(t):
        S=L[:]; del L[:]
        for i in range(2):
            for r in range(4):
                x=20+(i*8+t)*4+r
                lo(84,x); hi(85,x); e(f'v_sub_f32 v84, v84, v{MM[i]}'); e(f'v_sub_f32 v85, v85, v{MM[i]}')
                e('v_cvt_pk_bf16_f32 v84, v84, v85'); hi(85,84); lo(84,84)
                e(f'v_mul_f32 v86, v84, v{RI[i]}'); e(f'v_mul_f32 v87, v85, v{RI[i]}')
                e(f'v_fma_f32 v84, -v86, v{SQ[i]}, v84'); e(f'v_fma_f32 v85, -v87, v{SQ[i]}, v85')
                e(f'v_fmac_f32 v86, v84, v{RI[i]}'); e(f'v_fmac_f32 v87, v85, v{RI[i]}')
                e(f'v_cvt_pk_bf16_f32 v{x}, v86, v87')
        out=L[:]; L[:]=S; return out
    def xwrite(t):
        for i in range(2): e(f'ds_write_b128 v{XW[i]}, v[{20+(i*8+t)*4}:{20+(i*8+t)*4+3}] offset:{(t%2)*16384}')
    def reads(t,s):
        b=t%2; p=s%2
        e(f'ds_read_b128 v[{XF[p]}:{XF[p]+3}], v{XA+s} offset:{b*16384}')
        for tt in range(5):
            for ee in range(2):
                r=WF[p]+tt*4+ee*2
                e(f'ds_read_b64_tr_b16 v[{r}:{r+1}], v{WAR[tt]} offset:{b*40960+s*2048+ee*512}')
    def mf(s,tt):
        p=s%2; a=ACC+16*tt
        e(f'v_mfma_f32_32x32x16_bf16 v[{a}:{a+15}], v[{WF[p]+tt*4}:{WF[p]+tt*4+3}], v[{XF[p]}:{XF[p]+3}], v[{a}:{a+15}]')
    for r in range(80): e(f'v_mov_b32 v{ACC+r}, 0')
    for s_ in norm(0): L.append(s_)
    xwrite(0)
    e('s_waitcnt vmcnt(0) lgkmcnt(0)'); e('s_barrier')
    reads(0,0)
    NS=8
    for t in range(NS):
        for s in range(4):
            if s<3:
                if s==2 and t+1<NS: xwrite(t+1)
                reads(t,s+1); e('s_waitcnt lgkmcnt(11)')
            else:
                e('s_waitcnt vmcnt(0) lgkmcnt(0)'); e('s_barrier')
                if t+2<NS: dma(t+2)
                if t+1<NS: reads(t+1,0)
            nl=norm(t+1) if (s==1 and t+1<NS) else []
            ch=(len(nl)+4)//5
            for tt in range(5):
                mf(s,tt)
                for s_ in nl[tt*ch:(tt+1)*ch]: L.append(s_)
    e('s_nop 15'); e('s_nop 3')
    e('v_and_b32 v3, 31, v1'); e('v_lshrrev_b32 v4, 5, v1')
    e('s_lshl_b32 s17, s14, 7'); e('s_lshl_b32 s18, s20, 5'); e('s_add_u32 s17, s17, s18'); e('v_add_u32 v3, s17, v3')
    e('v_lshlrev_b32 v5, 5, v3'); e('v_lshl_add_u32 v5, v4, 3, v5'); e('v_add_u32 v6, 0x10000, v5')
    e('s_movk_i32 s24, 3584'); e('v_mul_lo_u32 v7, v3, s24'); e('v_lshl_add_u32 v7, v4, 3, v7')
    e(f's_add_u32 s36, s12, {WS_H}'); e('s_addc_u32 s37, s13, 0')
    e(f's_mov_b32 s38, {f2u(-2*0.7978845608028654*LOG2E):#x}'); e(f's_mov_b32 s39, {f2u(-2*0.7978845608028654*LOG2E*0.044715):#x}')
    e('s_lshl_b32 s43, s42, 2')
    for tt in range(5):
        a=ACC+16*tt
        e('s_mul_i32 s25, s21, 5'); e(f's_add_u32 s25, s25, {tt}')
        e('s_cmp_lt_u32 s25, 2'); e(f's_cbranch_scc1 k1_pl{tt}')
        e('s_cmp_lt_u32 s15, 14'); e(f's_cbranch_scc1 k1_ffn{tt}')
        e('s_sub_u32 s26, s25, 2'); e('s_lshr_b32 s27, s26, 2'); e('s_and_b32 s26, s26, 3'); e('s_lshl_b32 s27, s27, 3'); e('s_add_u32 s26, s26, s27'); e('s_add_u32 s26, s26, s43'); e('s_add_u32 s26, s26, 4'); e('s_add_u32 s27, s26, 4')
        e(f's_branch k1_q{tt}')
        lab(f'k1_pl{tt}'); e('s_lshl_b32 s26, s25, 1'); e('s_add_u32 s26, s26, s43'); e('s_add_u32 s27, s26, 1')
        lab(f'k1_q{tt}')
        e('s_lshl_b32 s26, s26, 16'); e('s_lshl_b32 s27, s27, 16'); e('s_add_u32 s28, s12, s26'); e('s_addc_u32 s29, s13, 0'); e('s_add_u32 s30, s12, s27'); e('s_addc_u32 s31, s13, 0')
        for g in range(4):
            e(f'v_cvt_pk_bf16_f32 v84, v{a+4*g}, v{a+4*g+1}'); e(f'v_cvt_pk_bf16_f32 v85, v{a+4*g+2}, v{a+4*g+3}')
            e(f'global_store_dwordx2 v5, v[84:85], s[{28+2*(g>>1)}:{29+2*(g>>1)}] offset:{(g&1)*16}')
            e('s_nop 0')
        e(f's_branch k1_nx{tt}')
        lab(f'k1_ffn{tt}')
        e('s_sub_u32 s26, s25, 2'); e('s_lshl_b32 s26, s26, 5'); e('s_lshl_b32 s27, s15, 8'); e('s_add_u32 s26, s26, s27'); e('v_add_u32 v8, s26, v7')
        for g in range(2):
            for r in range(4):
                G=a+4*g+r; U=a+8+4*g+r; T=86+r
                rbf(G,G); rbf(U,U)
                e(f'v_mul_f32 v84, v{G}, v{G}')
                e(f'v_mov_b32 v85, s38'); e(f'v_fmac_f32 v85, s39, v84'); e(f'v_mul_f32 v85, v85, v{G}')
                e('v_exp_f32 v85, v85'); e('s_nop 0'); e('v_add_f32 v85, 1.0, v85'); e('v_rcp_f32 v85, v85'); e('s_nop 0')
                e(f'v_mul_f32 v85, v85, v{G}'); rbf(85,85); e(f'v_mul_f32 v{T}, v85, v{U}')
            e('v_cvt_pk_bf16_f32 v84, v86, v87'); e('v_cvt_pk_bf16_f32 v85, v88, v89')
            e(f'global_store_dwordx2 v8, v[84:85], s[36:37] offset:{g*16}')
            e('s_nop 0')
        lab(f'k1_nx{tt}')
    lab('k1_end'); e('s_endpgm')

def k2():
    K='k2_kernel'
    L.append(f'.globl {K}\n.p2align 8\n.type {K},@function'); lab(K)
    S=100; KF=20; QF=56; VF=[60,64]; O=68
    e('s_cmp_ge_u32 s2, 512'); e('s_cbranch_scc1 k2_end')
    e('s_load_dwordx2 s[12:13], s[0:1], 72')
    e('s_lshr_b32 s14, s2, 4'); e('s_and_b32 s15, s2, 15')
    e('v_and_b32 v1, 63, v0'); e('v_lshrrev_b32 v2, 6, v0'); e('s_nop 0'); e('v_readfirstlane_b32 s16, v2')
    e('s_lshl_b32 s17, s15, 7'); e('s_lshl_b32 s18, s14, 11')
    e('v_lshrrev_b32 v3, 1, v1'); e('v_and_b32 v4, 1, v1')
    e('s_waitcnt lgkmcnt(0)')
    e(f's_add_u32 s20, s12, {2<<20}'); e('s_addc_u32 s21, s13, 0'); e(f's_add_u32 s22, s12, {4<<20}'); e('s_addc_u32 s23, s13, 0')
    for c in range(3):
        e(f's_add_u32 s24, s16, {4*c}'); e('s_lshl_b32 s25, s24, 5'); e('s_add_u32 s25, s25, s17'); e('s_sub_u32 s25, s25, 256')
        e('v_add_u32 v5, s25, v3'); e('v_max_i32 v5, 0, v5'); e('v_add_u32 v5, s18, v5'); e('v_lshlrev_b32 v5, 5, v5'); e('v_lshl_add_u32 v5, v4, 4, v5')
        e('s_lshl_b32 m0, s24, 10'); e('s_nop 0'); e('global_load_lds_dwordx4 v5, s[20:21]')
        e('s_lshl_b32 s24, s24, 10'); e('s_add_u32 m0, s24, 12288'); e('s_nop 0'); e('global_load_lds_dwordx4 v5, s[22:23]')
    e('v_and_b32 v6, 31, v1'); e('v_lshrrev_b32 v7, 5, v1')
    e('s_lshl_b32 s24, s16, 5'); e('s_add_u32 s25, s24, s17')
    e('s_add_u32 s26, s25, s18'); e('v_add_u32 v8, s26, v6'); e('v_lshlrev_b32 v8, 5, v8'); e('v_lshl_add_u32 v8, v7, 4, v8')
    e(f'global_load_dwordx4 v[{QF}:{QF+3}], v8, s[12:13]')
    e('v_add_u32 v9, s24, v6'); e('v_lshlrev_b32 v9, 5, v9'); e('v_lshl_add_u32 v9, v7, 4, v9')
    e('v_and_b32 v84, 15, v1'); e('v_lshrrev_b32 v85, 2, v84'); e('v_lshl_add_u32 v85, v7, 2, v85'); e('v_add_u32 v85, s24, v85'); e('v_lshlrev_b32 v85, 5, v85')
    e('v_and_b32 v84, 3, v84'); e('v_lshl_add_u32 v10, v84, 3, v85'); e('v_add_u32 v10, 0x3000, v10')
    e('v_lshlrev_b32 v84, 2, v7'); e('v_sub_u32 v11, v6, v84')
    e('v_mov_b32 v12, 0xff800000')
    e('s_lshr_b32 s27, s25, 5'); e('s_sub_u32 s27, 8, s27'); e('s_cmp_lt_u32 s25, 256'); e('s_cselect_b32 s27, s27, 0')
    e(f's_mov_b32 s28, {f2u(0.25*LOG2E):#x}')
    e('s_waitcnt vmcnt(0)'); e('s_barrier')
    for t in range(9): e(f'ds_read_b128 v[{KF+4*t}:{KF+4*t+3}], v9 offset:{t*1024}')
    for t in range(9):
        e(f's_waitcnt lgkmcnt({8-t})')
        e(f'v_mfma_f32_32x32x16_bf16 v[{S+16*t}:{S+16*t+15}], v[{KF+4*t}:{KF+4*t+3}], v[{QF}:{QF+3}], 0')
    e('s_nop 15')
    for t in range(9):
        b=S+16*t
        for r in range(0,16,2):
            e(f'v_cvt_pk_bf16_f32 v84, v{b+r}, v{b+r+1}'); lo(b+r,84); hi(b+r+1,84)
        if t in (0,8):
            for r0 in range(0,16,4):
                for r in range(r0,r0+4):
                    ko=(r//4)*8+r%4
                    e(f'v_cmp_{"gt" if t==0 else "le"}_i32 s[{40+2*(r%4)}:{41+2*(r%4)}], {ko}, v11')
                for r in range(r0,r0+4):
                    e(f'v_cndmask_b32 v{b+r}, v12, v{b+r}, s[{40+2*(r%4)}:{41+2*(r%4)}]')
        if t<8:
            e(f's_cmp_lt_u32 {t}, s27'); e(f's_cbranch_scc0 k2_sk{t}')
            for r in range(16): e(f'v_mov_b32 v{b+r}, v12')
            lab(f'k2_sk{t}')
    e(f'v_max_f32 v84, v{S}, v{S+1}')
    for r in range(2,144,2): e(f'v_max3_f32 v84, v84, v{S+r}, v{S+r+1}')
    e('v_mov_b32 v85, v84'); e('s_nop 1'); e('v_permlane32_swap_b32 v84, v85'); e('v_max_f32 v84, v84, v85'); e('v_mul_f32 v84, s28, v84')
    e('v_mov_b32 v86, 0'); e('v_mov_b32 v87, 0')
    for r in range(144):
        e(f'v_fma_f32 v{S+r}, v{S+r}, s28, -v84'); e(f'v_exp_f32 v{S+r}, v{S+r}')
    e('s_nop 0')
    for r in range(0,144,2): e(f'v_add_f32 v86, v86, v{S+r}'); e(f'v_add_f32 v87, v87, v{S+r+1}')
    e('v_add_f32 v86, v86, v87'); e('v_mov_b32 v85, v86'); e('s_nop 1'); e('v_permlane32_swap_b32 v86, v85'); e('v_add_f32 v86, v86, v85')
    e('v_rcp_f32 v86, v86'); e('s_nop 0')
    for r in range(0,144,2):
        e(f'v_mul_f32 v{S+r}, v{S+r}, v86'); e(f'v_mul_f32 v{S+r+1}, v{S+r+1}, v86'); e(f'v_cvt_pk_bf16_f32 v{S+r//2}, v{S+r}, v{S+r+1}')
    def vread(u):
        t,hf=divmod(u,2); p=u%2
        for ee in range(2): e(f'ds_read_b64_tr_b16 v[{VF[p]+2*ee}:{VF[p]+2*ee+1}], v10 offset:{t*1024+hf*512+ee*256}')
    vread(0)
    for u in range(18):
        if u<17: vread(u+1); e('s_waitcnt lgkmcnt(2)')
        else: e('s_waitcnt lgkmcnt(0)')
        c='0' if u==0 else f'v[{O}:{O+15}]'
        e(f'v_mfma_f32_32x32x16_bf16 v[{O}:{O+15}], v[{VF[u%2]}:{VF[u%2]+3}], v[{S+4*u}:{S+4*u+3}], {c}')
    e('s_nop 15'); e('s_nop 3')
    e('v_add_u32 v8, s25, v6'); e('v_lshlrev_b32 v8, 10, v8'); e('v_lshl_add_u32 v8, v7, 3, v8'); e('s_lshl_b32 s26, s14, 5'); e('v_add_u32 v8, s26, v8')
    e(f's_add_u32 s20, s12, {WS_O}'); e('s_addc_u32 s21, s13, 0')
    for g in range(2):
        e(f'v_cvt_pk_bf16_f32 v84, v{O+4*g}, v{O+4*g+1}'); e(f'v_cvt_pk_bf16_f32 v85, v{O+4*g+2}, v{O+4*g+3}')
        e(f'global_store_dwordx2 v8, v[84:85], s[20:21] offset:{16*g}'); e('s_nop 0')
    lab('k2_end'); e('s_endpgm')

def k3():
    K=NAME+'_kernel'
    L.append(f'.globl {K}\n.p2align 8\n.type {K},@function'); lab(K)
    ACC=[100,116]; AF=[20,24,28,32,36,40,44,48]; WF=[52,56,60,64,68,72,76,80]; AA=[150,154]; WA=[158,159]; AO=[160,162]; WO=164
    NB=4; R=5; GS=170; PS=4
    e('s_cmp_ge_u32 s2, 256'); e('s_cbranch_scc1 k3_end')
    e('s_load_dwordx2 s[4:5], s[0:1], 0'); e('s_load_dwordx2 s[6:7], s[0:1], 16'); e('s_load_dwordx2 s[8:9], s[0:1], 48')
    e('s_load_dwordx2 s[10:11], s[0:1], 56'); e('s_load_dwordx2 s[12:13], s[0:1], 72')
    e('s_and_b32 s14, s2, 7'); e('s_lshl_b32 s14, s14, 2'); e('s_lshr_b32 s15, s2, 6'); e('s_add_u32 s14, s14, s15'); e('s_lshr_b32 s15, s2, 3'); e('s_and_b32 s15, s15, 7')
    e('v_and_b32 v1, 63, v0'); e('v_lshrrev_b32 v2, 6, v0'); e('s_nop 0'); e('v_readfirstlane_b32 s16, v2')
    e('s_and_b32 s20, s16, 1'); e('s_lshr_b32 s21, s16, 1')
    e('v_lshrrev_b32 v3, 5, v1'); e('v_and_b32 v4, 31, v1')
    e('s_lshl_b32 s17, s14, 6'); e('s_lshl_b32 s18, s16, 4'); e('s_add_u32 s17, s17, s18'); e('v_lshrrev_b32 v5, 3, v1'); e('v_add_u32 v5, s17, v5')
    e('v_lshrrev_b32 v8, 4, v1'); e('v_and_b32 v9, 7, v1')
    for c in range(2):
        e(f'v_add_u32 v6, {4*c}, v8'); e('v_xor_b32 v6, v9, v6'); e('v_lshlrev_b32 v6, 4, v6')
        e(f'v_add_u32 v7, {8*c}, v5'); e(f'v_lshl_add_u32 v{AO[0]+c}, v7, 10, v6')
        e('s_movk_i32 s24, 3584'); e('v_mul_lo_u32 v7, v7, s24'); e(f'v_add_u32 v{AO[1]+c}, v7, v6')
    e('v_lshrrev_b32 v6, 3, v1'); e('v_lshrrev_b32 v7, 1, v6'); e('v_and_b32 v7, 1, v7'); e('v_lshlrev_b32 v7, 2, v7'); e('v_and_b32 v8, 7, v1'); e('v_xor_b32 v7, v7, v8')
    e('s_lshl_b32 s24, s16, 4'); e('v_add_u32 v6, s24, v6'); e('v_lshlrev_b32 v6, 10, v6'); e('v_lshl_add_u32 v6, v7, 4, v6'); e('s_lshl_b32 s24, s15, 7'); e(f'v_add_u32 v{WO}, s24, v6')
    e('s_lshl_b32 s24, s20, 5'); e('v_add_u32 v6, s24, v4'); e('v_lshlrev_b32 v7, 7, v6')
    e('v_lshrrev_b32 v8, 1, v1'); e('v_and_b32 v8, 7, v8'); e('v_and_b32 v84, 1, v8'); e('v_xor_b32 v9, v3, v84'); e('v_lshrrev_b32 v8, 1, v8')
    for s in range(4):
        e(f'v_xor_b32 v84, {s}, v8'); e('v_lshl_or_b32 v84, v84, 1, v9'); e(f'v_lshl_add_u32 v{AA[0]+s}, v84, 4, v7'); e(f'v_add_u32 v{AA[1]+s}, 0x10000, v{AA[0]+s}')
    e('v_lshrrev_b32 v7, 4, v1'); e('v_and_b32 v8, 15, v1')
    e('v_lshrrev_b32 v9, 1, v7'); e('v_lshlrev_b32 v9, 3, v9'); e('v_lshrrev_b32 v84, 2, v8'); e('v_add_u32 v9, v9, v84'); e('v_lshlrev_b32 v9, 7, v9')
    e('v_and_b32 v84, 1, v7'); e('v_lshl_add_u32 v9, v84, 5, v9'); e('v_and_b32 v84, 3, v8'); e('v_lshl_add_u32 v9, v84, 3, v9')
    e('v_lshrrev_b32 v84, 3, v8'); e('v_xor_b32 v84, s21, v84'); e('v_lshl_add_u32 v9, v84, 6, v9')
    e(f'v_add_u32 v{WA[0]}, 0x2000, v9'); e(f'v_add_u32 v{WA[1]}, 0x10000, v{WA[0]}')
    e('s_waitcnt lgkmcnt(0)')
    e('s_lshl_b32 s22, s16, 11')
    e('s_lshl_b32 s23, s16, 11'); e('s_add_u32 s23, s23, 8192')
    e('v_lshlrev_b32 v165, 4, v1'); e('v_add_u32 v166, s22, v165'); e('v_add_u32 v165, s23, v165')
    def gl(t):
        g=GS+(t%R)*16
        if t<8: ab=WS_O+t*128; wlo,whi='s6','s7'; wk=t*64; ao=AO[0]
        else: ab=WS_H+(t-8)*128; wlo,whi='s8','s9'; wk=(t-8)*64; ao=AO[1]
        e(f's_add_u32 s30, s12, {ab}'); e('s_addc_u32 s31, s13, 0')
        for c in range(2): e(f'global_load_dwordx4 v[{g+4*c}:{g+4*c+3}], v{ao+c}, s[30:31]')
        for c in range(2):
            e(f's_add_u32 s32, {wlo}, {(wk+c*8)*1024}'); e(f's_addc_u32 s33, {whi}, 0')
            e(f'global_load_dwordx4 v[{g+8+4*c}:{g+8+4*c+3}], v{WO}, s[32:33]')
    Q=[]
    def wfor(tag):
        idx=max(i for i,x in enumerate(Q) if x==tag); e(f's_waitcnt lgkmcnt({len(Q)-1-idx})')
    def dw(t):
        Q.extend([None]*4)
        g=GS+(t%R)*16; b=t%NB
        for c in range(2): e(f'ds_write_b128 v166, v[{g+4*c}:{g+4*c+3}] offset:{b*16384+c*1024}')
        for c in range(2): e(f'ds_write_b128 v165, v[{g+8+4*c}:{g+8+4*c+3}] offset:{b*16384+c*1024}')
    def reads(t,s):
        b=t%NB; p=(4*t+s)%8; hb=b//4; ob=(b%4)*16384; Q.extend([(t,s)]*3)
        e(f'ds_read_b128 v[{AF[p]}:{AF[p]+3}], v{AA[hb]+s} offset:{ob}')
        for ee in range(2):
            e(f'ds_read_b64_tr_b16 v[{WF[p]+2*ee}:{WF[p]+2*ee+1}], v{WA[hb]} offset:{ob+s*2048+ee*512}')
    for r in range(32): e(f'v_mov_b32 v{ACC[0]+r}, 0')
    for t in range(R): gl(t)
    e(f's_waitcnt vmcnt({PS*(R-2)})'); dw(0); dw(1); e('s_waitcnt lgkmcnt(0)'); e('s_barrier'); del Q[:]; gl(R); gl(R+1)
    NS=36
    for s_ in range(4): reads(0,s_)
    def rd(u):
        if u<4*NS: reads(u//4,u%4)
    for t in range(NS):
        a=ACC[0] if t<8 else ACC[1]
        for s in range(4):
            S8=(t%2)*4+s; u=4*t+s
            if S8<4: rd(u+4)
            if S8==5 and t+1<NS:
                rem=min(NS-1,t+R)-(t+2)
                e(f's_waitcnt vmcnt({PS*max(rem,0)})'); dw(t+1); dw(t+2)
            if S8==6:
                e('s_waitcnt lgkmcnt(0)'); e('s_barrier'); del Q[:]
                rd(u+2); rd(u+3)
            if S8==7:
                for uu in (t+1+R,t+2+R):
                    if uu<NS: gl(uu)
                rd(u+3); rd(u+4)
            if S8<6: wfor((t,s))
            p=(4*t+s)%8
            e(f'v_mfma_f32_32x32x16_bf16 v[{a}:{a+15}], v[{WF[p]}:{WF[p]+3}], v[{AF[p]}:{AF[p]+3}], v[{a}:{a+15}]')
    e('s_nop 15'); e('s_nop 3')
    e('s_lshl_b32 s17, s14, 6'); e('s_lshl_b32 s18, s20, 5'); e('s_add_u32 s17, s17, s18'); e('v_add_u32 v5, s17, v4'); e('v_lshlrev_b32 v5, 10, v5')
    e('v_lshl_add_u32 v5, v3, 3, v5'); e('s_lshl_b32 s24, s15, 7'); e('s_lshl_b32 s25, s21, 6'); e('s_add_u32 s24, s24, s25'); e('v_add_u32 v5, s24, v5')
    for g in range(4): e(f'global_load_dwordx2 v[{20+2*g}:{21+2*g}], v5, s[4:5] offset:{16*g}')
    e(f's_mov_b32 s38, {f2u(-LOG2E):#x}')
    for g in range(4):
        for r in range(4):
            Sg=ACC[0]+4*g+r; F=ACC[1]+4*g+r
            rbf(Sg,Sg); rbf(F,F)
            e(f'v_mul_f32 v85, s38, v{F}'); e('v_exp_f32 v85, v85'); e('s_nop 0'); e('v_add_f32 v85, 1.0, v85'); e('v_rcp_f32 v85, v85'); e('s_nop 0')
            e(f'v_mul_f32 v85, v85, v{F}'); rbf(85,85); e(f'v_mul_f32 v85, v85, v{Sg}'); rbf(Sg,85)
        if g==0: e('s_waitcnt vmcnt(0)')
        for r in range(4):
            x=20+2*g+r//2
            (lo if r%2==0 else hi)(84,x); e(f'v_add_f32 v{ACC[0]+4*g+r}, v84, v{ACC[0]+4*g+r}')
        e(f'v_cvt_pk_bf16_f32 v84, v{ACC[0]+4*g}, v{ACC[0]+4*g+1}'); e(f'v_cvt_pk_bf16_f32 v85, v{ACC[0]+4*g+2}, v{ACC[0]+4*g+3}')
        e(f'global_store_dwordx2 v5, v[84:85], s[10:11] offset:{16*g}'); e('s_nop 0')
    lab('k3_end'); e('s_endpgm')

def desc(K,vg):
    return f'''.amdhsa_kernel {K}
  .amdhsa_next_free_vgpr {vg}
  .amdhsa_next_free_sgpr 102
  .amdhsa_accum_offset {vg}
  .amdhsa_group_segment_fixed_size 0
  .amdhsa_kernarg_size 80
  .amdhsa_user_sgpr_count 2
  .amdhsa_user_sgpr_kernarg_segment_ptr 1
  .amdhsa_system_sgpr_workgroup_id_x 1
.end_amdhsa_kernel'''
hdr=open(f'cdna_kernels/{NAME}.s.ref').read().split('; @launch')[0]
k1(); k2(); k3()
out=hdr+f'''; @launch kernel=k1_kernel grid=(256,1,1) block=(512,1,1) lds=114688
; @launch kernel=k2_kernel grid=(512,1,1) block=(256,1,1) lds=24576
; @launch kernel={NAME}_kernel grid=(256,1,1) block=(256,1,1) lds=131072
.amdgcn_target "amdgcn-amd-amdhsa--gfx950"
.text
'''+'\n'.join(L)+'\n.section .rodata,"a"\n.p2align 6\n'+'\n'.join([desc('k1_kernel',256),'.p2align 6',desc('k2_kernel',256),'.p2align 6',desc(NAME+'_kernel',256)])+'\n'
open(f'cdna_kernels/{NAME}.s','w').write(out)
print(len(out))
```
